```python
import torch

def _softmax(x, axis=-1):
    return torch.softmax(x, dim=axis)
def _gelu(x):
    return torch.nn.functional.gelu(x, approximate="tanh")
def _silu(x):
    return torch.nn.functional.silu(x)
def _sigmoid(x):
    return torch.sigmoid(x)
def _layernorm(x, axis=-1, eps=1e-5):
    m = x.mean(dim=axis, keepdim=True)
    v = x.var(dim=axis, keepdim=True, unbiased=False)
    return (x - m) / torch.sqrt(v + eps)
def _scatter_add(tgt, idx, src, axis=0):
    return tgt.clone().index_add_(axis, idx, src)
def _segment_sum(src, seg, n):
    out = torch.zeros((n,) + src.shape[1:], dtype=src.dtype)
    return out.index_add_(0, seg, src)
def _pad(x, pw):
    flat = tuple(v for pair in reversed(pw) for v in pair)
    return torch.nn.functional.pad(x, flat)

kernel_name = 'recurrent_scan__sliding_local_dilated__glu_gated_glu__prompt'

def setup_inputs():

    _w = (lambda a: (lambda t: t.to(torch.bfloat16) if t.is_floating_point() else t)(torch.as_tensor(a)))
    def _A_setup():
        B, S, D = 1, 2048, 512
        return {
            "x": _w((lambda *s: torch.randn(*s, dtype=torch.bfloat16) * 0.05)(B, S, D)),
            "wqkv": _w((lambda *s: torch.randn(*s, dtype=torch.bfloat16) * 0.05)(D, 3 * D)),
            "wo": _w((lambda *s: torch.randn(*s, dtype=torch.bfloat16) * 0.05)(D, D)),
        }
    _A_in = _A_setup()

    def _B_setup():
        B, S, D, F = 1, 2048, 512, 1792
        return {
            "x": _w((lambda *s: torch.randn(*s, dtype=torch.bfloat16) * 0.05)(B, S, D)),
            "w_gate": _w((lambda *s: torch.randn(*s, dtype=torch.bfloat16) * 0.05)(D, F)),
            "w_up": _w((lambda *s: torch.randn(*s, dtype=torch.bfloat16) * 0.05)(D, F)),
            "w_down": _w((lambda *s: torch.randn(*s, dtype=torch.bfloat16) * 0.05)(F, D)),
        }
    _B_in = _B_setup()

    return {
        "A_x": _A_in["x"],
        "A_wqkv": _A_in["wqkv"],
        "A_wo": _A_in["wo"],
        "B_x": _B_in["x"],
        "B_w_gate": _B_in["w_gate"],
        "B_w_up": _B_in["w_up"],
        "B_w_down": _B_in["w_down"],
    }

def reference(A_x, A_wqkv, A_wo, B_x, B_w_gate, B_w_up, B_w_down):
    def _A_ref(x, wqkv, wo):
        B, S, D = x.shape
        H = 32; Dh = D // H
        W, dil = 8, 2
        qkv = (lambda x, *d: x.permute(*d))((x @ wqkv).reshape(B, S, 3, H, Dh), 2, 0, 3, 1, 4)
        q, k, v = qkv[0], qkv[1], qkv[2]
        scale = Dh ** -0.5
        pos = torch.arange(S)
        off = torch.arange(W) * dil
        idx = pos[:, None] - off[None, :]
        mask = idx >= 0
        idx_c = torch.where(mask, idx, 0).reshape(-1)
        kg = k[:, :, idx_c, :].reshape(B, H, S, W, Dh)
        vg = v[:, :, idx_c, :].reshape(B, H, S, W, Dh)
        logits = torch.einsum("bhsd,bhswd->bhsw", q, kg) * scale
        logits = torch.where(mask[None, None, :, :], logits, -1e9)
        attn = _softmax(logits, axis=-1)
        o = torch.einsum("bhsw,bhswd->bhsd", attn, vg)
        return (lambda x, *d: x.permute(*d))(o, 0, 2, 1, 3).reshape(B, S, D) @ wo

    def _B_ref(x, w_gate, w_up, w_down):
        g = torch.einsum("bsd,df->bsf", x, w_gate)
        u = torch.einsum("bsd,df->bsf", x, w_up)
        h = _sigmoid(g) * u
        return torch.einsum("bsf,fd->bsd", h, w_down)

    x = A_x
    xn = _layernorm(x, axis=-1)
    s = _A_ref(xn, A_wqkv, A_wo)
    g = _silu(_B_ref(xn, B_w_gate, B_w_up, B_w_down))
    return x + s * g
```

```python
import re

TRANS = ("v_exp_f32", "v_log_f32", "v_rcp_f32", "v_rsq_f32", "v_sqrt_f32", "v_sin_f32", "v_cos_f32", "v_rcp_iflag_f32")

def regs_of(tok):
    tok = tok.strip()
    tok = re.sub(r"^-|^abs\(|\)$|^\|", "", tok).rstrip("|")
    m = re.fullmatch(r"([vsa])(\d+)", tok)
    if m: return [(m.group(1), int(m.group(2)))]
    m = re.fullmatch(r"([vsa])\[(\d+):(\d+)\]", tok)
    if m: return [(m.group(1), i) for i in range(int(m.group(2)), int(m.group(3)) + 1)]
    if tok in ("vcc", "vcc_lo", "vcc_hi"): return [("x", "vcc")]
    if tok in ("exec", "exec_lo", "exec_hi"): return [("x", "exec")]
    if tok == "m0": return [("x", "m0")]
    return []

class Ins:
    __slots__ = ("text", "op", "dst", "src", "kind", "passes", "srcc", "srcab", "states", "wide_store", "dpp")
    def __init__(self, text):
        self.text = text
        t = text.split(";")[0].strip()
        parts = t.split(None, 1)
        op = parts[0]; self.op = op
        rest = parts[1] if len(parts) > 1 else ""
        ops = [o.strip() for o in re.split(r",(?![^\[]*\])", rest)] if rest else []
        mods = ""
        if ops:
            sp = ops[-1].split(None, 1)
            ops[-1] = sp[0]
            if len(sp) > 1: mods = sp[1]
        self.dst = []; self.src = []; self.kind = "other"; self.passes = 0; self.srcc = []; self.srcab = []
        self.states = 1; self.wide_store = False
        self.dpp = ("quad_perm" in mods or "row_" in mods or "wave_" in mods or op.endswith("_dpp"))
        R = regs_of
        if op == "s_nop":
            self.kind = "nop"; self.states = int(ops[0], 0) + 1
        elif op.startswith("v_mfma"):
            self.kind = "mfma"
            self.passes = 8 if "32x32" in op else 4
            self.dst = R(ops[0]); self.srcab = R(ops[1]) + R(ops[2]); self.srcc = R(ops[3]); self.src = self.srcab + self.srcc
        elif op.startswith("v_cmp"):
            self.kind = "valu"; self.dst = R(ops[0]); self.src = sum((R(o) for o in ops[1:]), [])
        elif op.startswith("v_readfirstlane") or op.startswith("v_readlane"):
            self.kind = "rdlane"; self.dst = R(ops[0]); self.src = sum((R(o) for o in ops[1:]), [])
        elif op.startswith("v_permlane"):
            self.kind = "perm"; self.dst = R(ops[0]) + R(ops[1]); self.src = list(self.dst)
        elif op.startswith("v_"):
            self.kind = "trans" if op.replace("_e32", "").replace("_e64", "") in TRANS else "valu"
            self.dst = R(ops[0]); srcs = ops[1:]
            if "_co_" in op:
                self.dst += R(ops[1]); srcs = ops[2:]
            self.src = sum((R(o) for o in srcs), [])
            if op.startswith(("v_fmac", "v_mac", "v_dot2c", "v_pk_fmac")): self.src += R(ops[0])
            if self.dpp: self.src += R(ops[0])
        elif op.startswith(("buffer_load", "global_load")):
            if " lds" in (" " + mods) or "_lds_" in op:
                self.kind = "dma"; self.src = sum((R(o) for o in ops), []) + [("x", "m0")]
            else:
                self.kind = "vload"; self.dst = R(ops[0]); self.src = sum((R(o) for o in ops[1:]), [])
        elif op.startswith(("buffer_store", "global_store")):
            self.kind = "vstore"; self.src = sum((R(o) for o in ops), [])
            self.wide_store = op.endswith(("x3", "x4"))
            data = ops[0] if op.startswith("buffer") else ops[1]
            self.srcc = R(data)
        elif op.startswith(("buffer_atomic", "global_atomic")):
            self.kind = "vstore"; self.src = sum((R(o) for o in ops), [])
            if "sc0" in mods: self.dst = R(ops[0])
        elif op.startswith("ds_read") or op.startswith(("ds_bpermute", "ds_permute", "ds_swizzle")):
            self.kind = "dsread"; self.dst = R(ops[0]); self.src = sum((R(o) for o in ops[1:]), [])
        elif op.startswith("ds_"):
            self.kind = "dswrite"; self.src = sum((R(o) for o in ops), [])
        elif op.startswith(("s_load", "s_buffer_load", "s_memtime", "s_memrealtime")):
            self.kind = "smem"; self.dst = R(ops[0]); self.src = sum((R(o) for o in ops[1:]), [])
        elif op.startswith(("s_cmp", "s_cbranch", "s_branch", "s_waitcnt", "s_barrier", "s_endpgm", "s_setprio", "s_sleep", "s_bitcmp", "buffer_inv", "buffer_wbl2", "s_sethalt")):
            self.kind = "sctl"; self.src = sum((R(o) for o in ops), [])
        elif op.startswith("s_"):
            self.kind = "salu"; self.dst = R(ops[0]); self.src = sum((R(o) for o in ops[1:]), [])
            if "saveexec" in op: self.dst += [("x", "exec")]
        else:
            raise ValueError("unknown op " + text)

VALUISH = ("valu", "trans", "perm", "rdlane")

def need_states(p, c):
    n = 0
    pd = set(p.dst);
    cs = set(c.src); cd = set(c.dst)
    pv = {r for r in pd if r[0] in "va"}
    ps = {r for r in pd if r[0] == "s" or r == ("x", "vcc")}
    if p.kind in VALUISH:
        if c.kind == "mfma" and pv & cs: n = max(n, 2)
        if c.kind == "rdlane" and pv & cs: n = max(n, 1)
        if c.kind == "perm" and pv & cs: n = max(n, 2)
        if c.dpp and pv & cs: n = max(n, 2)
        if p.kind == "trans" and c.kind in ("valu", "perm", "rdlane", "mfma", "vstore", "dswrite", "dsread", "vload", "dma") and pv & cs: n = max(n, 1)
        if ps & cs:
            if c.kind in ("valu", "trans", "mfma"): n = max(n, 2)
            if c.kind == "rdlane": n = max(n, 4)
            if c.kind in ("vload", "vstore", "dma"): n = max(n, 5)
            if c.kind in ("salu", "sctl", "smem"): n = max(n, 1)
    if p.kind == "mfma":
        big = {4: 8, 8: 12}[p.passes]
        if c.kind == "mfma":
            if pv & set(c.srcab): n = max(n, big)
            if pv & set(c.srcc):
                if not (p.dst == c.srcc and p.passes == c.passes): n = max(n, {4: 6, 8: 10}[p.passes])
            elif pv & cd:
                n = max(n, {4: 6, 8: 10}[p.passes])
        else:
            if pv & (cs | cd): n = max(n, big)
        if c.kind in VALUISH and set(p.srcc) & cd: n = max(n, {4: 3, 8: 7}[p.passes])
    if p.kind == "salu" and ("x", "m0") in pd and c.kind == "dma": n = max(n, 1)
    if p.kind == "vstore" and p.wide_store and set(p.srcc) & cd:
        n = max(n, 2 if c.kind in VALUISH + ("mfma",) else 1)
    return n

class Asm:
    def __init__(self):
        self.items = []
        self.kernels = []
        self.header = []
        self.nlab = 0
    def __call__(self, s):
        for l in s.strip("\n").split("\n"):
            l = l.strip()
            if not l or l.startswith(";"): continue
            self.items.append(Ins(l))
    def raw(self, l): self.items.append(l)
    def label(self, l): self.items.append(l + ":")
    def newlabel(self, p="L"):
        self.nlab += 1; return f"{p}_{self.nlab}"
    def begin(self, name):
        for l in (f".globl {name}", ".p2align 8", f".type {name},@function", f"{name}:"): self.items.append(l)
    def kernel(self, name, grid, block, lds, nvgpr, nsgpr=102, accum=None):
        self.kernels.append((name, grid, block, lds, nvgpr, nsgpr, accum))
    def resolve(self):
        out = []; hist = []
        nn = 0
        for it in self.items:
            if isinstance(it, str):
                out.append(it); continue
            need = 0; dist = 0
            for p in reversed(hist):
                r = need_states(p, it) - dist
                if r > need: need = r
                dist += p.states
                if dist >= 20: break
            while need > 0:
                k = min(need, 16)
                nop = Ins(f"s_nop {k-1}"); out.append(nop); hist.append(nop); need -= k; nn += 1
            out.append(it); hist.append(it)
            if len(hist) > 40: hist = hist[-30:]
        self.n_auto_nops = nn
        return out
    def fence(self, n=12):
        while n > 0:
            k = min(n, 16); self(f"s_nop {k-1}"); n -= k
    def text(self, launches=None):
        out = list(self.header)
        launches = launches or [k[0] for k in self.kernels]
        kd = {k[0]: k for k in self.kernels}
        for n in launches:
            _, g, b, lds, *_r = kd[n]
            out.append(f"; @launch kernel={n} grid=({g[0]},{g[1]},{g[2]}) block=({b[0]},{b[1]},{b[2]}) lds={lds}")
        out.append('.amdgcn_target "amdgcn-amd-amdhsa--gfx950"')
        out.append(".text")
        for it in self.resolve():
            out.append(it if isinstance(it, str) else "    " + it.text)
        out.append('.section .rodata,"a"')
        for (name, g, b, lds, nv, ns, acc) in self.kernels:
            if acc is None: acc = min(256, (nv + 3) // 4 * 4)
            out += [".p2align 6", f".amdhsa_kernel {name}", f"  .amdhsa_next_free_vgpr {nv}", f"  .amdhsa_next_free_sgpr {ns}",
                    f"  .amdhsa_accum_offset {acc}", "  .amdhsa_group_segment_fixed_size 0", "  .amdhsa_kernarg_size 80",
                    "  .amdhsa_user_sgpr_count 2", "  .amdhsa_user_sgpr_kernarg_segment_ptr 1", "  .amdhsa_system_sgpr_workgroup_id_x 1",
                    "  .amdhsa_float_denorm_mode_32 3",
                    ".end_amdhsa_kernel"]
        return "\n".join(out) + "\n"

def vr(b, n=1):
    return f"v{b}" if n == 1 else f"v[{b}:{b+n-1}]"
def sr(b, n=1):
    return f"s{b}" if n == 1 else f"s[{b}:{b+n-1}]"

class RegAlloc:
    def __init__(self, start=0, limit=256):
        self.n = start; self.limit = limit
    def __call__(self, n=1, align=None):
        if align is None: align = 1 if n == 1 else 2
        self.n = (self.n + align - 1) // align * align
        r = self.n; self.n += n
        assert self.n <= self.limit, f"out of regs {self.n}"
        return r

def interleave(main, fill, start=0, every=1):
    out = []; fi = 0
    for i, m in enumerate(main):
        out.append(m)
        if i >= start and (i - start) % every == 0 and fi < len(fill):
            out.append(fill[fi]); fi += 1
    out += fill[fi:]
    return out
```

```python
import sys
from gasm import Asm, vr, sr, RegAlloc, interleave

WS_ROWTAB = 0
WS_RSTD = 16384
WS_CS = 32768
WS_HF = 1 << 20
HF_BYTES = 128 * 72 * 1024
LOG2E = 0x3fb8aa3b
NEG_BIG = 0xf149f2ca

STAMPS = len(sys.argv) > 2 and sys.argv[2] == "stamps"

def srd(a, d, base, nbytes, add=None):
    if add is None:
        a(f"s_mov_b32 s{d}, s{base}\ns_mov_b32 s{d+1}, s{base+1}")
    else:
        a(f"s_add_u32 s{d}, s{base}, {add}\ns_addc_u32 s{d+1}, s{base+1}, 0")
    a(f"s_mov_b32 s{d+2}, {nbytes}\ns_mov_b32 s{d+3}, 0x20000")

def stamp_init(a):
    if STAMPS:
        for i in range(8): a(f"s_mov_b32 s{72+2*i}, 0")
def stamp(a, i):
    if STAMPS: a(f"s_memrealtime s[{72+2*i}:{73+2*i}]")
def stamp_write(a, slot_base, swave, vtmp=0):
    if not STAMPS: return
    a("s_waitcnt lgkmcnt(0) vmcnt(0)")
    for i in range(8): a(f"v_mov_b32 v{vtmp+i}, s{72+2*i}")
    a(f"s_lshl_b32 s98, s2, 3\ns_add_u32 s98, s98, s{swave}\ns_add_u32 s98, s98, {slot_base}\ns_lshl_b32 s98, s98, 5\ns_add_u32 s98, s98, {128<<20}")
    a(f"v_mov_b32 v{vtmp+8}, s98")
    a(f"v_mbcnt_lo_u32_b32 v{vtmp+9}, -1, 0\nv_mbcnt_hi_u32_b32 v{vtmp+9}, -1, v{vtmp+9}")
    a(f"v_cmp_eq_u32 vcc, 0, v{vtmp+9}")
    a("s_and_saveexec_b64 s[100:101], vcc")
    a(f"global_store_dwordx4 v{vtmp+8}, v[{vtmp}:{vtmp+3}], s[88:89]")
    a(f"global_store_dwordx4 v{vtmp+8}, v[{vtmp+4}:{vtmp+7}], s[88:89] offset:16")
    a("s_mov_b64 exec, s[100:101]")

DPPM = "row_mask:0xf bank_mask:0xf"
def wave_reduce_add(a, v, t, lo_steps=("quad_perm:[1,0,3,2]", "quad_perm:[2,3,0,1]", "row_half_mirror", "row_mirror")):
    for d in lo_steps:
        a(f"v_add_f32_dpp v{v}, v{v}, v{v} {d} {DPPM}")
    a(f"v_mov_b32 v{t}, v{v}\nv_permlane16_swap_b32 v{v}, v{t}\nv_add_f32 v{v}, v{v}, v{t}")
    a(f"v_mov_b32 v{t}, v{v}\nv_permlane32_swap_b32 v{v}, v{t}\nv_add_f32 v{v}, v{v}, v{t}")

def gen_k0(a):
    a.begin("stats_kernel")
    a("s_cmp_ge_u32 s2, 336\ns_cbranch_scc1 K0_end")
    a("s_load_dwordx4 s[4:7], s[0:1], 0\ns_load_dwordx4 s[40:43], s[0:1], 32\ns_load_dwordx2 s[44:45], s[0:1], 72")
    a("v_and_b32 v1, 63, v0\nv_lshrrev_b32 v2, 6, v0")
    a("s_waitcnt lgkmcnt(0)")
    a("s_cmp_ge_u32 s2, 256\ns_cbranch_scc1 K0_col")
    srd(a, 8, 4, 2048 * 1024)
    srd(a, 12, 44, 32768)
    a("s_lshl_b32 s3, s2, 13\nv_lshlrev_b32 v3, 4, v0")
    a("buffer_load_dwordx4 v[4:7], v3, s[8:11], s3 offen")
    a("s_waitcnt vmcnt(0)")
    for i in range(4):
        a(f"v_lshlrev_b32 v{8+2*i}, 16, v{4+i}\nv_and_b32 v{9+2*i}, 0xffff0000, v{4+i}")
    a("v_add_f32 v16, v8, v9")
    for i in range(2, 8): a(f"v_add_f32 v16, v16, v{8+i}")
    wave_reduce_add(a, 16, 17)
    a("v_mul_f32 v16, 0x3b000000, v16")
    for i in range(8): a(f"v_sub_f32 v{8+i}, v{8+i}, v16")
    a("v_mul_f32 v18, v8, v8")
    for i in range(1, 8): a(f"v_fmac_f32 v18, v{8+i}, v{8+i}")
    wave_reduce_add(a, 18, 17)
    a("v_mul_f32 v18, 0x3b000000, v18")
    a("v_cvt_pk_bf16_f32 v18, v18, v18\nv_lshlrev_b32 v18, 16, v18")
    a("v_add_f32 v18, 0x3727c5ac, v18")
    a("v_cvt_pk_bf16_f32 v18, v18, v18\nv_lshlrev_b32 v18, 16, v18")
    a("v_sqrt_f32 v18, v18")
    a("v_cvt_pk_bf16_f32 v18, v18, v18\nv_lshlrev_b32 v18, 16, v18")
    a("v_rcp_f32 v21, v18")
    a("v_sub_f32 v16, 0, v16\nv_cvt_pk_bf16_f32 v20, v16, v16")
    a("s_lshl_b32 s3, s2, 3\nv_add_u32 v2, s3, v2")
    a("v_lshlrev_b32 v3, 3, v2\nv_lshlrev_b32 v4, 2, v2")
    a("v_cmp_eq_u32 vcc, 0, v1\ns_and_saveexec_b64 s[30:31], vcc")
    a("buffer_store_dwordx2 v[20:21], v3, s[12:15], 0 offen")
    a(f"s_movk_i32 s3, {WS_RSTD}")
    a("buffer_store_dword v21, v4, s[12:15], s3 offen")
    a("s_endpgm")
    a.label("K0_col")
    a("s_sub_u32 s3, s2, 256")
    a("s_mov_b32 s20, s6\ns_mov_b32 s21, s7\ns_movk_i32 s22, 3072\ns_mov_b32 s23, s3")
    a("s_cmp_lt_u32 s3, 24\ns_cbranch_scc1 K0_sel")
    a("s_mov_b32 s20, s40\ns_mov_b32 s21, s41\ns_movk_i32 s22, 3584\ns_sub_u32 s23, s3, 24")
    a("s_cmp_lt_u32 s3, 52\ns_cbranch_scc1 K0_sel")
    a("s_mov_b32 s20, s42\ns_mov_b32 s21, s43\ns_sub_u32 s23, s3, 52")
    a.label("K0_sel")
    a("s_mov_b32 s8, s20\ns_mov_b32 s9, s21\ns_lshl_b32 s10, s22, 9\ns_mov_b32 s11, 0x20000")
    srd(a, 12, 44, 40960, add=WS_CS)
    a("v_lshrrev_b32 v3, 3, v0\nv_mul_lo_u32 v3, v3, s22\nv_and_b32 v4, 7, v0\nv_lshl_add_u32 v3, v4, 4, v3")
    a("s_lshl_b32 s24, s23, 7\ns_lshl_b32 s25, s22, 6")
    for i in range(8):
        a(f"buffer_load_dwordx4 v[{8+4*i}:{11+4*i}], v3, s[8:11], s24 offen")
        a("s_add_u32 s24, s24, s25")
    for j in range(8): a(f"v_mov_b32 v{48+j}, 0")
    a("s_waitcnt vmcnt(0)")
    for i in range(8):
        for d in range(4):
            a(f"v_lshlrev_b32 v40, 16, v{8+4*i+d}\nv_and_b32 v41, 0xffff0000, v{8+4*i+d}")
            a(f"v_add_f32 v{48+2*d}, v{48+2*d}, v40\nv_add_f32 v{49+2*d}, v{49+2*d}, v41")
    for j in range(8):
        wave_reduce_add(a, 48 + j, 40, lo_steps=("row_ror:8",))
    a("v_lshlrev_b32 v5, 8, v2\nv_lshl_add_u32 v5, v1, 5, v5")
    a("v_cmp_gt_u32 vcc, 8, v1\ns_and_saveexec_b64 s[30:31], vcc")
    a("ds_write_b128 v5, v[48:51]\nds_write_b128 v5, v[52:55] offset:16")
    a("s_mov_b64 exec, s[30:31]")
    a("s_waitcnt lgkmcnt(0)\ns_barrier")
    a("v_cmp_gt_u32 vcc, 64, v0\ns_and_saveexec_b64 s[30:31], vcc\ns_cbranch_execz K0_end")
    a("v_lshlrev_b32 v5, 2, v0")
    for w in range(8): a(f"ds_read_b32 v{8+w}, v5 offset:{256*w}")
    a("s_waitcnt lgkmcnt(0)")
    for w in range(1, 8): a(f"v_add_f32 v8, v8, v{8+w}")
    a("v_cvt_pk_bf16_f32 v20, v8, v8\nv_lshlrev_b32 v21, 16, v20\nv_sub_f32 v8, v8, v21")
    a("v_cvt_pk_bf16_f32 v22, v8, v8\nv_lshlrev_b32 v21, 16, v22\nv_sub_f32 v8, v8, v21")
    a("v_cvt_pk_bf16_f32 v23, v8, v8")
    a("v_and_b32 v20, 0xffff, v20\nv_or_b32 v24, v20, v21\nv_and_b32 v25, 0xffff, v23")
    a("v_lshlrev_b32 v5, 3, v0\ns_lshl_b32 s3, s3, 9")
    a("buffer_store_dwordx2 v[24:25], v5, s[12:15], s3 offen")
    a.label("K0_end")
    a("s_endpgm")
    a.kernel("stats_kernel", (336, 1, 1), (512, 1, 1), 2048, 64)

class VM:
    def __init__(self): self.tags = []
    def add(self, tag): self.tags.append(tag)
    def wait(self, tags):
        last = max(i for i, t in enumerate(self.tags) if t in tags)
        n = len(self.tags) - 1 - last
        assert n <= 63
        return n

S_X, S_WA, S_WB, S_HF, S_RT, S_RS, S_CS = 8, 12, 16, 20, 24, 28, 32
S_WAVE, S_ROT = 36, 37
S_XO, S_WO = 40, 48
S_T0, S_T1, S_LW, S_ROW0 = 56, 57, 58, 59
S_M3 = 60
S_L2E = 64

def mfma32(d, A, B, c=None):
    return f"v_mfma_f32_16x16x32_bf16 {vr(d,4)}, {vr(A,4)}, {vr(B,4)}, {vr(d,4) if c is None else c}"
def mfma16(d, A, B, c=None):
    return f"v_mfma_f32_16x16x16_bf16 {vr(d,4)}, {vr(A,2)}, {vr(B,2)}, {vr(d,4) if c is None else c}"

def main_loop(a, vm, reads, mfmas, dma_after, need_tags, late=None):
    a(f"s_waitcnt vmcnt({vm.wait(need_tags(0))})\ns_barrier")
    stamp(a, 2)
    for r in reads(0, 0, 0): a(r)
    for s in range(8):
        a("s_waitcnt lgkmcnt(0)")
        for l in interleave(mfmas(0, s == 0), reads(s, 1, 1)): a(l)
        if s < 7:
            a(f"s_waitcnt vmcnt({vm.wait(need_tags(s+1))}) lgkmcnt(0)\ns_barrier")
            d = dma_after(s)
            if late and s == late[0]: d = d + late[1]
            for t, _ in d: vm.add(t)
            fill = reads(s + 1, 0, 0) + [x for _, x in d]
        else:
            a("s_waitcnt lgkmcnt(0)")
            fill = []
        for l in interleave(mfmas(1, False), fill): a(l)
        if s == 3: stamp(a, 3)

def gen_glu(a, NT, lab_end):
    XP = 24576; WB0 = 3 * XP; WP = 16384
    R = RegAlloc(16)
    acc = [[R(4, 4) for ct in range(4)] for t in range(NT)]
    xf = [[R(4, 4) for t in range(NT)] for st in range(2)]
    wf = [[R(4, 4) for ct in range(4)] for st in range(2)]
    rt = [R(2, 2) for t in range(NT)]
    cs = [R(2, 2) for ct in range(4)]
    V_XD = (4, 5, 6); V_WD = 7; V_XR = (8, 9); V_WR = ((10, 11), (12, 13)); V_RT = 14; V_CS = 15
    vm = VM()
    def dma_x(s):
        out = []
        for i in range(3):
            out.append((f"x{s}", f"s_add_u32 m0, s{S_LW}, {(s % 3) * XP + i * 8192}\nbuffer_load_dwordx4 v{V_XD[i]}, {sr(S_X,4)}, s{S_XO+s} offen lds"))
        return out
    def dma_w(h):
        s = h >> 1; out = []
        for mat in range(2):
            pre = f"s_add_u32 s{S_T0}, s{S_WO+s}, {(h & 1) * 32 * 3584}\n" if mat == 0 else ""
            out.append((f"h{h}", f"s_add_u32 m0, s{S_LW}, {WB0 + (h % 5) * WP + mat * 8192}\n{pre}buffer_load_dwordx4 v{V_WD}, {sr((S_WA, S_WB)[mat],4)}, s{S_T0} offen lds"))
        return out
    for t, x in dma_x(0) + dma_w(0) + dma_w(1) + dma_x(1) + dma_w(2) + dma_w(3) + dma_x(2) + dma_w(4):
        a(x); vm.add(t)
    stamp(a, 1)
    def reads(s, half, st):
        out = []
        h = 2 * s + half; slot = h % 5
        wr = []
        for ct in range(4):
            tt, mat = ct >> 1, ct & 1
            for e in range(2):
                off = slot * WP + mat * 8192 + e * 1024
                hi = off > 65535
                wr.append(f"ds_read_b64_tr_b16 {vr(wf[st][ct]+2*e,2)}, v{V_WR[hi][tt]} offset:{off - (65536 if hi else 0)}")
        xr = [f"ds_read_b128 {vr(xf[st][t],4)}, v{V_XR[half]} offset:{(s % 3) * XP + t * 2048}" for t in range(NT)]
        return wr[:2] + xr + wr[2:]
    def mfmas(st, first):
        return [mfma32(acc[t][ct], wf[st][ct], xf[st][t], "0" if first else None) for ct in range(4) for t in range(NT)]
    def dma_after(s):
        out = []
        for h in (2 * s + 5, 2 * s + 6):
            if h < 16: out += dma_w(h)
        if s + 3 < 8: out += dma_x(s + 3)
        return out
    def need(s): return (f"x{s}", f"h{2*s}", f"h{2*s+1}")
    late = []
    for t in range(NT):
        late.append(("tab", f"buffer_load_dwordx2 {vr(rt[t],2)}, v{V_RT}, {sr(S_RT,4)}, 0 offen offset:{t*128}"))
    for ct in range(4):
        tt, mat = ct >> 1, ct & 1
        late.append(("tab", f"s_movk_i32 s{S_T1}, {mat*1792*8}\nbuffer_load_dwordx2 {vr(cs[ct],2)}, v{V_CS}, {sr(S_CS,4)}, s{S_T1} offen offset:{tt*128}"))
    main_loop(a, vm, reads, mfmas, dma_after, need, late=(6, late))
    stamp(a, 4)
    T = RegAlloc(xf[0][0], limit=rt[0])
    a("s_waitcnt vmcnt(0)")
    mf = [T(2, 2) for t in range(NT)]
    vM0, vM1 = T(), T()
    a(f"v_cmp_gt_u32 vcc, 16, v1")
    a(f"v_cndmask_b32 v{vM0}, 0, -1, vcc")
    a(f"v_lshrrev_b32 v{vM1}, 16, v{vM0}")
    for t in range(NT):
        a(f"v_and_b32 v{mf[t]}, v{rt[t]}, v{vM0}\nv_and_b32 v{mf[t]+1}, v{rt[t]}, v{vM1}")
    for t in range(NT):
        for ct in range(4):
            a(mfma16(acc[t][ct], cs[ct], mf[t]))
    for t in range(NT):
        a(f"v_mul_f32 v{rt[t]}, s{S_L2E}, v{rt[t]+1}")
    pk = [T(4, 4) for _ in range(2)]
    for t in range(NT):
        G = [acc[t][0] + j for j in range(4)] + [acc[t][2] + j for j in range(4)]
        U = [acc[t][1] + j for j in range(4)] + [acc[t][3] + j for j in range(4)]
        for g in G: a(f"v_mul_f32 v{g}, v{g}, v{rt[t]}")
        for g in G: a(f"v_exp_f32 v{g}, v{g}")
        for u in U: a(f"v_mul_f32 v{u}, v{u}, v{rt[t]+1}")
        for g in G: a(f"v_add_f32 v{g}, 1.0, v{g}")
        for g in G: a(f"v_rcp_f32 v{g}, v{g}")
        for g, u in zip(G, U): a(f"v_mul_f32 v{u}, v{u}, v{g}")
        p = pk[t & 1]
        for i in range(4): a(f"v_cvt_pk_bf16_f32 v{p+i}, v{U[2*i]}, v{U[2*i+1]}")
        a(f"s_add_u32 s{S_T0}, s{S_ROW0}, {t*72*1024}")
        a(f"buffer_store_dwordx4 {vr(p,4)}, v3, {sr(S_HF,4)}, s{S_T0} offen")
    stamp(a, 5)
    a(f"s_branch {lab_end}")
    return R.n

def gen_qkv(a, lab_end):
    XP = 26624; WB0 = 3 * XP; WP = 24576; SCR = WB0 + 3 * WP
    R = RegAlloc(20)
    NT = 7
    aq = [None] + [R(4, 4) for t in range(1, NT)]
    ak = [R(4, 4) for t in range(NT)]
    av = [R(4, 4) for t in range(NT)]
    xf = [[R(4, 4) for t in range(NT)] for st in range(2)]
    wf = [[R(4, 4) for m in range(3)] for st in range(2)]
    rs4 = [R(4, 4) for t in range(NT)]
    rt = [R(2, 2) for t in range(NT)]
    cs = [R(2, 2) for m in range(3)]
    V_XD = (4, 5, 6, 16); V_WD = 7; V_XR = (8, 9); V_WR = (10, 11); V_RT = 14; V_CS = 15; V_RS = 17
    vm = VM()
    def dma_x(s):
        out = []
        for i in range(3):
            out.append((f"x{s}", f"s_add_u32 m0, s{S_LW}, {(s % 3) * XP + i * 8192}\nbuffer_load_dwordx4 v{V_XD[i]}, {sr(S_X,4)}, s{S_XO+s} offen lds"))
        out.append((f"x{s}", f"s_mov_b32 m0, s{S_M3 + s % 3}\nbuffer_load_dwordx4 v{V_XD[3]}, {sr(S_X,4)}, s{S_XO+s} offen lds"))
        return out
    def dma_w(s):
        out = []
        for mat in range(3):
            out.append((f"w{s}", f"s_add_u32 m0, s{S_LW}, {WB0 + (s % 3) * WP + mat * 8192}\ns_add_u32 s{S_T0}, s{S_WO+s}, {mat*1024}\nbuffer_load_dwordx4 v{V_WD}, {sr(S_WA,4)}, s{S_T0} offen lds"))
        return out
    for i in range(3):
        a(f"s_add_u32 s{S_T0}, s{S_LW}, {i*XP + 3*8192}\ns_cmp_lt_u32 s{S_WAVE}, 2\ns_cselect_b32 s{S_M3+i}, s{S_T0}, {SCR}")
    for s in range(3):
        for t, x in dma_x(s) + dma_w(s):
            a(x); vm.add(t)
    stamp(a, 1)
    def reads(s, half, st):
        wr = []
        for mat in range(3):
            for e in range(2):
                off = (s % 3) * WP + mat * 8192 + half * 4096 + e * 512
                hi = (s % 3) == 2
                wr.append(f"ds_read_b64_tr_b16 {vr(wf[st][mat]+2*e,2)}, v{V_WR[hi]} offset:{off - (2*WP if hi else 0)}")
        if s % 3 == 2:
            xr = [f"ds_read_b128 {vr(xf[st][t],4)}, v{18+half} offset:{t * 2048}" for t in range(NT)]
        else:
            xr = [f"ds_read_b128 {vr(xf[st][t],4)}, v{V_XR[half]} offset:{(s % 3) * XP + t * 2048}" for t in range(NT)]
        return wr[2:4] + xr + wr[:2] + wr[4:]
    def mfmas(st, first):
        c = "0" if first else None
        out = [mfma32(ak[t], wf[st][1], xf[st][t], c) for t in range(NT)]
        out += [mfma32(aq[t], wf[st][0], xf[st][t], c) for t in range(1, NT)]
        out += [mfma32(av[t], xf[st][t], wf[st][2], c) for t in range(NT)]
        return out
    def dma_after(s):
        return dma_w(s + 3) + dma_x(s + 3) if s + 3 < 8 else []
    def need(s): return (f"x{s}", f"w{s}")
    late = []
    for t in range(NT):
        late.append(("tab", f"v_add_u32 v12, {t*128}, v{V_RT}\nbuffer_load_dwordx2 {vr(rt[t],2)}, v12, {sr(S_RT,4)}, 0 offen"))
        late.append(("tab", f"v_add_u32 v13, {t*64}, v{V_RS}\nbuffer_load_dwordx4 {vr(rs4[t],4)}, v13, {sr(S_RS,4)}, 0 offen"))
    for m in range(3):
        late.append(("tab", f"s_movk_i32 s{S_T1}, {m*512*8}\nbuffer_load_dwordx2 {vr(cs[m],2)}, v{V_CS}, {sr(S_CS,4)}, s{S_T1} offen"))
    main_loop(a, vm, reads, mfmas, dma_after, need, late=(5, late))
    stamp(a, 4)
    T = RegAlloc(xf[0][0], limit=rs4[0])
    a("s_waitcnt vmcnt(0)")
    mf = [T(2, 2) for t in range(NT)]
    vM0, vM1 = T(), T()
    a(f"v_cmp_gt_u32 vcc, 16, v1")
    a(f"v_cndmask_b32 v{vM0}, 0, -1, vcc")
    a(f"v_lshrrev_b32 v{vM1}, 16, v{vM0}")
    for t in range(NT):
        a(f"v_and_b32 v{mf[t]}, v{rt[t]}, v{vM0}\nv_and_b32 v{mf[t]+1}, v{rt[t]}, v{vM1}")
    for t in range(NT):
        a(mfma16(ak[t], cs[1], mf[t]))
        if t: a(mfma16(aq[t], cs[0], mf[t]))
        a(mfma16(av[t], mf[t], cs[2]))
    Bc, Bp, Bf, ones = T(4, 4), T(4, 4), T(4, 4), T(4, 4)
    vm_, vk, vd, vbig = T(), T(), T(), T()
    a(f"v_and_b32 v{vm_}, 15, v1\nv_lshrrev_b32 v{vk}, 4, v1\nv_lshlrev_b32 v{vk}, 2, v{vk}")
    a(f"v_mov_b32 v{vbig}, 0x{NEG_BIG:x}")
    a(f"v_sub_u32 v{vd}, v{vm_}, v{vk}")
    for j in range(4):
        a(f"v_subrev_u32 v{Bc+j}, {j}, v{vd}")
        a(f"v_add_u32 v{Bp+j}, 1, v{Bc+j}")
        a(f"v_and_b32 v{Bc+j}, 0x80000001, v{Bc+j}")
        a(f"v_cmp_eq_u32 vcc, 0, v{Bc+j}")
        a(f"v_cndmask_b32 v{Bc+j}, v{vbig}, 0, vcc")
        a(f"v_and_b32 v{Bp+j}, 0x80000001, v{Bp+j}")
        a(f"v_cmp_eq_u32 vcc, 0x80000001, v{Bp+j}")
        a(f"v_cndmask_b32 v{Bp+j}, v{vbig}, 0, vcc")
        a(f"v_mov_b32 v{ones+j}, 0x3f803f80")
    a(f"s_cmp_lt_i32 s{S_ROW0}, 0\ns_cselect_b64 vcc, -1, 0")
    for j in range(4): a(f"v_cndmask_b32 v{Bf+j}, v{Bp+j}, v{vbig}, vcc")
    Kb = T(2 * NT, 2); Vb = T(2 * NT, 2); Qb = T(2 * NT, 2)
    for t in range(NT):
        for j in range(4): a(f"v_mul_f32 v{ak[t]+j}, v{ak[t]+j}, v{rt[t]+1}")
        for j in range(4): a(f"v_mul_f32 v{av[t]+j}, v{av[t]+j}, v{rs4[t]+j}")
        if t:
            a(f"v_mul_f32 v{rt[t]}, 0x3e800000, v{rt[t]+1}")
            for j in range(4): a(f"v_mul_f32 v{aq[t]+j}, v{aq[t]+j}, v{rt[t]}")
        for i in range(2):
            a(f"v_cvt_pk_bf16_f32 v{Kb+2*t+i}, v{ak[t]+2*i}, v{ak[t]+2*i+1}")
            a(f"v_cvt_pk_bf16_f32 v{Vb+2*t+i}, v{av[t]+2*i}, v{av[t]+2*i+1}")
            if t: a(f"v_cvt_pk_bf16_f32 v{Qb+2*t+i}, v{aq[t]+2*i}, v{aq[t]+2*i+1}")
    for t in range(1, NT):
        a(mfma16(ak[t], Kb + 2 * (t - 1), Qb + 2 * t, vr(Bf if t == 1 else Bp, 4)))
        a(mfma16(av[t], Kb + 2 * t, Qb + 2 * t, vr(Bc, 4)))
    for t in range(1, NT):
        m = rs4[t]
        a(f"v_max3_f32 v{m}, v{ak[t]}, v{ak[t]+1}, v{ak[t]+2}")
        a(f"v_max3_f32 v{m+1}, v{ak[t]+3}, v{av[t]}, v{av[t]+1}")
        a(f"v_max3_f32 v{m}, v{m}, v{av[t]+2}, v{av[t]+3}")
        a(f"v_max_f32 v{m}, v{m}, v{m+1}")
        a(f"v_mov_b32 v{m+1}, v{m}")
    for t in range(1, NT): a(f"v_permlane16_swap_b32 v{rs4[t]}, v{rs4[t]+1}")
    for t in range(1, NT): a(f"v_max_f32 v{rs4[t]}, v{rs4[t]}, v{rs4[t]+1}\nv_mov_b32 v{rs4[t]+1}, v{rs4[t]}")
    for t in range(1, NT): a(f"v_permlane32_swap_b32 v{rs4[t]}, v{rs4[t]+1}")
    for t in range(1, NT):
        a(f"v_max_f32 v{rs4[t]}, v{rs4[t]}, v{rs4[t]+1}")
        a(f"v_mul_f32 v{rs4[t]}, s{S_L2E}, v{rs4[t]}")
    for t in range(1, NT):
        S = [ak[t] + j for j in range(4)] + [av[t] + j for j in range(4)]
        for x in S: a(f"v_fma_f32 v{x}, -v{x}, s{S_L2E}, v{rs4[t]}")
        for x in S: a(f"v_exp_f32 v{x}, v{x}")
        for i in range(4): a(f"v_cvt_pk_bf16_f32 v{aq[t]+i}, v{S[2*i]}, v{S[2*i+1]}")
    for t in range(1, NT):
        a(mfma32(ak[t], Vb + 2 * (t - 1), aq[t], "0"))
        a(mfma32(av[t], ones, aq[t], "0"))
    for t in range(1, NT):
        a(f"v_rcp_f32 v{av[t]}, v{av[t]}")
    for t in range(1, NT):
        for j in range(4): a(f"v_mul_f32 v{ak[t]+j}, v{ak[t]+j}, v{av[t]}")
        a(f"v_cvt_pk_bf16_f32 v{ak[t]}, v{ak[t]}, v{ak[t]+1}\nv_cvt_pk_bf16_f32 v{ak[t]+1}, v{ak[t]+2}, v{ak[t]+3}")
        a(f"s_add_u32 s{S_T0}, s{S_ROW0}, {t*72*1024}")
        a(f"buffer_store_dwordx2 {vr(ak[t],2)}, v3, {sr(S_HF,4)}, s{S_T0} offen")
    stamp(a, 5)
    a(f"s_branch {lab_end}")
    return R.n

def gen_k1(a):
    a.begin("phase1_kernel")
    a("s_cmp_ge_u32 s2, 256\ns_cbranch_scc1 K1_exit")
    stamp_init(a); stamp(a, 0)
    a("s_load_dwordx4 s[4:7], s[0:1], 0\ns_load_dwordx4 s[68:71], s[0:1], 32\ns_load_dwordx2 s[88:89], s[0:1], 72")
    a("v_and_b32 v1, 63, v0\nv_lshrrev_b32 v2, 6, v0")
    a(f"v_readfirstlane_b32 s{S_WAVE}, v2")
    a(f"s_lshl_b32 s{S_LW}, s{S_WAVE}, 10")
    a(f"s_mov_b32 s{S_L2E}, 0x{LOG2E | 0x80000000:x}")
    a("s_and_b32 s90, s2, 7\ns_lshr_b32 s91, s2, 3")
    a("v_and_b32 v20, 15, v1\nv_lshrrev_b32 v21, 4, v1\nv_lshrrev_b32 v22, 3, v1\nv_and_b32 v23, 7, v1")
    a(f"s_and_b32 s92, s{S_WAVE}, 1\ns_lshl_b32 s92, s92, 2")
    a("v_or_b32 v24, s92, v21\nv_xor_b32 v24, v24, v23\nv_lshlrev_b32 v24, 4, v24")
    a("v_lshl_add_u32 v25, v2, 3, v22\nv_lshl_add_u32 v24, v25, 10, v24")
    a("v_lshrrev_b32 v25, 1, v20\nv_xor_b32 v25, v25, v21\nv_lshlrev_b32 v25, 4, v25\nv_lshl_add_u32 v25, v20, 7, v25")
    a(f"s_lshr_b32 s93, s{S_WAVE}, 2\ns_mul_i32 s93, s93, {6*2048}")
    a("v_add_u32 v8, s93, v25\nv_xor_b32 v9, 64, v8")
    a("v_lshlrev_b32 v3, 4, v1")
    a("v_bfe_u32 v26, v1, 2, 2\nv_and_b32 v27, 3, v1")
    a("s_cmp_lt_u32 s91, 11\ns_cbranch_scc1 K1_qkv")
    a("s_mul_i32 s94, s90, 21\ns_add_u32 s94, s94, s91\ns_sub_u32 s94, s94, 11")
    a("s_mul_i32 s95, s94, 43691\ns_lshr_b32 s95, s95, 19")
    a("s_mul_i32 s96, s95, 12\ns_sub_u32 s96, s94, s96")
    a(f"s_add_u32 s{S_ROT}, s95, s96")
    for s in range(8):
        a(f"s_add_u32 s{S_T0}, s{S_ROT}, {s}\ns_and_b32 s{S_T0}, s{S_T0}, 7\ns_lshl_b32 s{S_XO+s}, s{S_T0}, 7\ns_mul_i32 s{S_WO+s}, s{S_T0}, {64*3584}")
    a(f"s_mul_i32 s97, s96, {176*1024}")
    a("v_add_u32 v4, s97, v24\nv_add_u32 v5, 0x10000, v4\nv_add_u32 v6, 0x20000, v4")
    a(f"s_cmp_ge_u32 s{S_WAVE}, 6\ns_cselect_b64 vcc, -1, 0")
    a("v_mov_b32 v28, 0x80000000\nv_cndmask_b32 v6, v6, v28, vcc")
    a(f"s_bfe_u32 s92, s{S_WAVE}, 0x10001\ns_lshl_b32 s92, s92, 2")
    a("v_or_b32 v28, s92, v21\nv_lshrrev_b32 v29, 1, v20\nv_xor_b32 v28, v28, v29\nv_lshlrev_b32 v28, 5, v28")
    a("v_and_b32 v29, 1, v1\nv_lshl_add_u32 v28, v29, 4, v28")
    a("v_lshl_add_u32 v29, v2, 2, v21\nv_mul_u32_u24 v29, 3584, v29\nv_add_u32 v28, v28, v29")
    a("s_lshl_b32 s92, s95, 8\nv_add_u32 v7, s92, v28")
    a(f"s_and_b32 s92, s{S_WAVE}, 3\ns_lshl_b32 s92, s92, 1")
    a("v_and_b32 v28, 1, v21\nv_lshl_or_b32 v28, v28, 2, v26\nv_xor_b32 v28, s92, v28\nv_lshlrev_b32 v28, 5, v28")
    a("v_lshl_add_u32 v28, v27, 3, v28\nv_lshl_add_u32 v29, v21, 3, v26\nv_lshl_add_u32 v28, v29, 8, v28")
    a(f"v_add_u32 v10, {3*24576}, v28\nv_xor_b32 v11, 32, v10\nv_add_u32 v12, 0x10000, v10\nv_add_u32 v13, 0x10000, v11")
    a(f"s_lshr_b32 s93, s{S_WAVE}, 2\ns_mul_i32 s93, s93, 6\ns_mul_i32 s97, s96, 11\ns_add_u32 s93, s93, s97")
    a("s_lshl_b32 s97, s93, 7\nv_lshl_add_u32 v14, v20, 3, s97")
    a("s_lshl_b32 s97, s95, 2\ns_lshr_b32 s92, s92, 1\ns_add_u32 s97, s97, s92")
    a("s_lshl_b32 s92, s97, 8\ns_add_u32 s92, s92, 12288\nv_lshl_add_u32 v15, v20, 3, s92")
    a(f"s_mul_i32 s93, s93, 72\ns_add_u32 s93, s93, s97\ns_add_u32 s93, s93, 16\ns_lshl_b32 s{S_ROW0}, s93, 10")
    a("s_waitcnt lgkmcnt(0)")
    srd(a, S_X, 4, 2048 * 1024)
    srd(a, S_WA, 68, 512 * 3584)
    srd(a, S_WB, 70, 512 * 3584)
    srd(a, S_HF, 88, HF_BYTES, add=WS_HF)
    srd(a, S_RT, 88, 16384)
    srd(a, S_CS, 88, 40960, add=WS_CS)
    a(f"s_cmp_ge_u32 s{S_WAVE}, 4\ns_cbranch_scc1 K1_glu5")
    n1 = gen_glu(a, 6, "K1_end")
    a.label("K1_glu5")
    n2 = gen_glu(a, 5, "K1_end")
    a.label("K1_qkv")
    a(f"s_add_u32 s{S_ROT}, s90, s91")
    for s in range(8):
        a(f"s_add_u32 s{S_T0}, s{S_ROT}, {s}\ns_and_b32 s{S_T0}, s{S_T0}, 7\ns_lshl_b32 s{S_XO+s}, s{S_T0}, 7\ns_mul_i32 s{S_WO+s}, s{S_T0}, {64*3072}")
    a(f"s_mul_i32 s97, s91, {192*1024}\ns_sub_u32 s97, s97, 16384")
    a("v_add_u32 v4, s97, v24\nv_add_u32 v5, 0x10000, v4\nv_add_u32 v6, 0x20000, v4\nv_add_u32 v16, 0x30000, v4")
    a(f"s_cmp_ge_u32 s{S_WAVE}, 2\ns_cselect_b64 vcc, -1, 0")
    a("v_mov_b32 v28, 0x80000000\nv_cndmask_b32 v16, v16, v28, vcc")
    a(f"s_and_b32 s92, s{S_WAVE}, 1\ns_lshl_b32 s92, s92, 1")
    a("v_and_b32 v28, 1, v21\nv_or_b32 v28, s92, v28\nv_lshrrev_b32 v29, 1, v23\nv_xor_b32 v28, v28, v29\nv_lshlrev_b32 v28, 5, v28")
    a("v_and_b32 v29, 1, v1\nv_lshl_add_u32 v28, v29, 4, v28")
    a("v_lshl_add_u32 v29, v2, 3, v22\nv_mul_u32_u24 v29, 3072, v29\nv_add_u32 v28, v28, v29")
    a("s_lshl_b32 s92, s90, 7\nv_add_u32 v7, s92, v28")
    a(f"s_and_b32 s92, s{S_WAVE}, 3")
    a("v_and_b32 v28, 1, v21\nv_lshlrev_b32 v28, 1, v28\nv_lshrrev_b32 v29, 1, v26\nv_or_b32 v28, v28, v29\nv_xor_b32 v28, s92, v28\nv_lshlrev_b32 v28, 5, v28")
    a("v_lshl_add_u32 v28, v27, 3, v28\nv_lshl_add_u32 v29, v21, 3, v26\nv_lshl_add_u32 v28, v29, 7, v28")
    a(f"v_add_u32 v10, {3*26624}, v28\nv_add_u32 v11, {2*24576}, v10")
    a(f"v_add_u32 v18, {2*26624}, v8\nv_add_u32 v19, {2*26624}, v9")
    a(f"s_lshr_b32 s93, s{S_WAVE}, 2\ns_mul_i32 s93, s93, 6\ns_mul_i32 s97, s91, 12\ns_add_u32 s93, s93, s97\ns_sub_u32 s93, s93, 1")
    a("s_lshl_b32 s97, s93, 7\nv_lshl_add_u32 v14, v20, 3, s97")
    a("s_lshl_b32 s97, s93, 6\nv_lshl_add_u32 v17, v21, 4, s97")
    a("s_lshl_b32 s97, s90, 2\ns_add_u32 s97, s97, s92\ns_lshl_b32 s96, s97, 7\nv_lshl_add_u32 v15, v20, 3, s96")
    a(f"s_mul_i32 s93, s93, 72\ns_lshr_b32 s96, s97, 1\ns_add_u32 s93, s93, s96\ns_lshl_b32 s{S_ROW0}, s93, 10")
    a("s_and_b32 s96, s97, 1\ns_lshl_b32 s96, s96, 3\nv_add_u32 v3, s96, v3")
    a("s_waitcnt lgkmcnt(0)")
    srd(a, S_X, 4, 2048 * 1024)
    srd(a, S_WA, 6, 512 * 3072)
    srd(a, S_HF, 88, HF_BYTES, add=WS_HF)
    srd(a, S_RT, 88, 16384)
    srd(a, S_RS, 88, 8192, add=WS_RSTD)
    srd(a, S_CS, 88, 40960, add=WS_CS)
    n3 = gen_qkv(a, "K1_end")
    a.label("K1_end")
    if STAMPS:
        a("s_waitcnt vmcnt(0)"); stamp(a, 6)
    stamp_write(a, 0, S_WAVE)
    a.label("K1_exit")
    a("s_endpgm")
    a.kernel("phase1_kernel", (256, 1, 1), (512, 1, 1), 155648, max(n1, n2, n3))
    print("K1 vgprs", n1, n2, n3, file=sys.stderr)

def gen_k2(a):
    NR = 10; SL = 32768
    a.begin("phase2_kernel")
    a("s_cmp_ge_u32 s2, 256\ns_cbranch_scc1 K2_exit")
    stamp_init(a); stamp(a, 0)
    a("s_load_dwordx2 s[4:5], s[0:1], 0\ns_load_dwordx2 s[6:7], s[0:1], 16\ns_load_dwordx4 s[68:71], s[0:1], 48\ns_load_dwordx2 s[88:89], s[0:1], 72")
    a("v_and_b32 v1, 63, v0\nv_lshrrev_b32 v2, 6, v0")
    a(f"v_readfirstlane_b32 s{S_WAVE}, v2")
    a("s_and_b32 s90, s2, 7\ns_lshr_b32 s91, s2, 3")
    a("s_and_b32 s92, s91, 3\ns_lshl_b32 s93, s90, 2\ns_add_u32 s93, s93, s92")
    a("s_lshr_b32 s94, s91, 2")
    a(f"s_and_b32 s95, s{S_WAVE}, 3\ns_lshr_b32 s96, s{S_WAVE}, 2")
    a("s_mul_i32 s40, s95, 19\ns_sub_u32 s40, s40, 3\ns_cmp_eq_u32 s95, 0\ns_cselect_b32 s40, 0, s40")
    a("s_mov_b32 s41, 19\ns_cselect_b32 s41, 16, s41\ns_cmp_eq_u32 s95, 3\ns_cselect_b32 s41, 18, s41")
    a("s_lshl_b32 s42, s92, 1\ns_add_u32 s42, s42, s94\ns_cmp_ge_u32 s42, 10\ns_cselect_b32 s43, 10, 0\ns_sub_u32 s42, s42, s43")
    a("v_and_b32 v20, 15, v1\nv_lshrrev_b32 v21, 4, v1\nv_lshrrev_b32 v22, 3, v1\nv_and_b32 v23, 7, v1\nv_bfe_u32 v26, v1, 2, 2\nv_and_b32 v27, 3, v1")
    a("v_lshrrev_b32 v28, 1, v23\nv_xor_b32 v28, v28, v21\nv_lshlrev_b32 v28, 5, v28\nv_and_b32 v29, 1, v1\nv_lshl_add_u32 v28, v29, 4, v28")
    a("v_lshl_add_u32 v28, v22, 10, v28")
    a("s_lshl_b32 s97, s94, 7\ns_lshl_b32 s43, s96, 15\ns_add_u32 s97, s97, s43\nv_add_u32 v4, s97, v28")
    a(f"s_lshl_b32 s{S_LW}, s95, 13\ns_lshl_b32 s43, s96, 12\ns_add_u32 s{S_LW}, s{S_LW}, s43")
    a("v_and_b32 v28, 1, v21\nv_lshlrev_b32 v28, 1, v28\nv_lshrrev_b32 v29, 1, v26\nv_or_b32 v28, v28, v29\nv_lshlrev_b32 v28, 5, v28")
    a("v_lshl_add_u32 v28, v27, 3, v28\nv_lshl_add_u32 v29, v21, 2, v26\nv_lshl_add_u32 v28, v29, 7, v28")
    a("s_lshl_b32 s43, s95, 13\nv_add_u32 v8, s43, v28\nv_xor_b32 v9, 32, v8\nv_xor_b32 v10, 64, v8\nv_xor_b32 v11, 0x60, v8")
    for i in range(4): a(f"v_add_u32 v{12+i}, 0x10000, v{8+i}")
    a("s_lshl_b32 s43, s93, 2\ns_lshl_b32 s97, s96, 1\ns_add_u32 s43, s43, s97\ns_mul_i32 s43, s43, 72\ns_add_u32 s43, s43, s40\ns_lshl_b32 s43, s43, 10")
    a(f"v_lshl_add_u32 v5, v1, 4, s43\nv_add_u32 v6, {72*1024}, v5")
    a("s_waitcnt lgkmcnt(0)")
    a("s_sub_u32 s43, s40, 16\ns_lshl_b32 s43, s43, 15\ns_add_u32 s44, s68, s43\ns_addc_u32 s45, s69, 0")
    a(f"s_cmp_eq_u32 s95, 0\ns_cselect_b32 s{S_WA}, s6, s44\ns_cselect_b32 s{S_WA+1}, s7, s45\ns_lshl_b32 s{S_WA+2}, s41, 15\ns_mov_b32 s{S_WA+3}, 0x20000")
    srd(a, S_HF, 88, HF_BYTES, add=WS_HF)
    srd(a, S_X, 4, 2048 * 1024)
    srd(a, S_WB, 70, 2048 * 1024)
    R = RegAlloc(32)
    acc = [[R(4, 4) for ct in range(4)] for tt in range(2)]
    hf = [[[R(4, 4) for tt in range(2)] for e in range(2)] for sl in range(4)]
    wf = [[R(4, 4) for ct in range(4)] for e in range(2)]
    vm = VM()
    S_RND = 42
    def issue(rho):
        out = []
        a_ = out.append
        pre = f"s_lshl_b32 s{S_T0}, s{S_RND}, 16\n"
        for i in range(4):
            a_((f"r{rho}", f"s_add_u32 m0, s{S_LW}, {(rho % 4) * SL + i * 1024}\n{pre}buffer_load_dwordx4 v4, {sr(S_WA,4)}, s{S_T0} offen lds"))
            pre = f"s_add_u32 s{S_T0}, s{S_T0}, 8192\n"
        for e in range(2):
            pre = f"s_lshl_b32 s{S_T1}, s{S_RND}, 1\ns_add_u32 s{S_T1}, s{S_T1}, {e}\ns_cmp_lt_u32 s{S_T1}, s41\ns_cselect_b32 s{S_T1}, s{S_T1}, 0x100000\ns_lshl_b32 s{S_T1}, s{S_T1}, 10\n"
            for tt in range(2):
                post = ""
                if e == 1 and tt == 1:
                    post = f"\ns_add_u32 s{S_RND}, s{S_RND}, 1\ns_cmp_eq_u32 s{S_RND}, {NR}\ns_cselect_b32 s{S_RND}, 0, s{S_RND}"
                a_((f"r{rho}", f"{pre}buffer_load_dwordx4 {vr(hf[rho % 4][e][tt],4)}, v{5+tt}, {sr(S_HF,4)}, s{S_T1} offen{post}"))
                pre = ""
        return out
    for rho in range(3):
        for t, x in issue(rho): a(x); vm.add(t)
    stamp(a, 1)
    a("v_lshrrev_b32 v16, 3, v0\nv_and_b32 v17, 7, v0")
    a("s_lshl_b32 s43, s93, 16\ns_lshl_b32 s97, s94, 7\ns_add_u32 s43, s43, s97")
    a("v_lshlrev_b32 v18, 10, v16\nv_lshl_add_u32 v18, v17, 4, v18\nv_add_u32 v18, s43, v18")
    xr = R(4, 4)
    for rho in range(NR):
        a(f"s_waitcnt vmcnt({vm.wait((f'r{rho}',))})\ns_barrier")
        if rho == 0: stamp(a, 2)
        rd = []
        for e in range(2):
            for ct in range(4):
                for h in range(2):
                    off = (rho % 4) * SL + e * 4096 + h * 2048
                    hi = off > 65535
                    rd.append(f"ds_read_b64_tr_b16 {vr(wf[e][ct]+2*h,2)}, v{(12 if hi else 8)+ct} offset:{off - (65536 if hi else 0)}")
        for r in rd[:8]: a(r)
        if rho + 3 < NR:
            for t, x in issue(rho + 3): a(x); vm.add(t)
        elif rho + 3 == NR:
            a(f"buffer_load_dwordx4 {vr(xr,4)}, v18, {sr(S_X,4)}, 0 offen"); vm.add("xr")
        for r in rd[8:]: a(r)
        for e in range(2):
            a(f"s_waitcnt lgkmcnt({8 if e == 0 else 0})")
            for ct in range(4):
                for tt in range(2):
                    a(mfma32(acc[tt][ct], wf[e][ct], hf[rho % 4][e][tt], "0" if (rho == 0 and e == 0) else None))
    stamp(a, 3)
    a("s_barrier")
    a(f"s_mul_i32 s43, s95, 17408\ns_mul_i32 s97, s96, {32*272}\ns_add_u32 s43, s43, s97")
    a("v_mul_u32_u24 v28, 272, v20\nv_lshl_add_u32 v28, v21, 4, v28\nv_add_u32 v28, s43, v28")
    for tt in range(2):
        for ct in range(4):
            a(f"ds_write_b128 v28, {vr(acc[tt][ct],4)} offset:{tt*16*272 + ct*64}")
    a("v_mul_u32_u24 v29, 272, v16\nv_lshl_add_u32 v29, v17, 5, v29")
    a("s_waitcnt lgkmcnt(0)\ns_barrier")
    P = hf[0][0][0]
    for q in range(4):
        for h in range(2):
            a(f"ds_read_b128 {vr(P+8*q+4*h,4)}, v29 offset:{q*17408 + h*16}")
    a(f"s_mov_b32 s{S_L2E}, 0x{LOG2E | 0x80000000:x}")
    a("s_waitcnt lgkmcnt(0)")
    E = wf[0][0]
    for j in range(8): a(f"v_add_f32 v{P+8+j}, v{P+8+j}, v{P+16+j}")
    for j in range(8): a(f"v_add_f32 v{P+8+j}, v{P+8+j}, v{P+24+j}")
    for j in range(8): a(f"v_mul_f32 v{E+j}, s{S_L2E}, v{P+8+j}")
    for j in range(8): a(f"v_exp_f32 v{E+j}, v{E+j}")
    for j in range(8): a(f"v_mul_f32 v{P+j}, v{P+j}, v{P+8+j}")
    for j in range(8): a(f"v_add_f32 v{E+j}, 1.0, v{E+j}")
    for j in range(8): a(f"v_rcp_f32 v{E+j}, v{E+j}")
    a("s_waitcnt vmcnt(0)")
    for i in range(4):
        a(f"v_lshlrev_b32 v{P+16+2*i}, 16, v{xr+i}\nv_and_b32 v{P+17+2*i}, 0xffff0000, v{xr+i}")
    for j in range(8): a(f"v_fmac_f32 v{P+16+j}, v{P+j}, v{E+j}")
    for i in range(4): a(f"v_cvt_pk_bf16_f32 v{xr+i}, v{P+16+2*i}, v{P+17+2*i}")
    a(f"buffer_store_dwordx4 {vr(xr,4)}, v18, {sr(S_WB,4)}, 0 offen")
    stamp(a, 4)
    if STAMPS:
        a("s_waitcnt vmcnt(0)"); stamp(a, 5)
    stamp_write(a, 2048, S_WAVE)
    a.label("K2_exit")
    a("s_endpgm")
    a.kernel("phase2_kernel", (256, 1, 1), (512, 1, 1), 131072, R.n)
    print("K2 vgprs", R.n, file=sys.stderr)

if __name__ == "__main__":
    a = Asm()
    hdr = open("recurrent_scan__sliding_local_dilated__glu_gated_glu__prompt.s.ref").read().split("\n")
    a.header = [l for l in hdr if l.startswith(";") and "@launch" not in l and "Override" not in l and "grid=ceil" not in l]
    gen_k0(a); gen_k1(a); gen_k2(a)
    open(sys.argv[1], "w").write(a.text())
    print("auto nops", a.n_auto_nops, file=sys.stderr)
```

```python
import sys
from gasm import Asm, vr, sr, RegAlloc

KNAME = "recurrent_scan__sliding_local_dilated__glu_gated_glu__prompt_kernel"
WS_CNT = 0
WS_RP = 4096
RP_BYTES = 132 * 1024
WS_CPG = WS_RP + RP_BYTES
WS_CPQ = WS_CPG + 112 * 1024
SYNC_BYTES = WS_CPQ + 32 * 2048
WS_HF = 1 << 20
HF_BYTES = 128 * 72 * 1024
LOG2E = 0x3fb8aa3b
NEG_BIG = 0xf149f2ca
HUGE_S = 0x40000000
LT_ROW = 155648; LT_CS = 157696; LT_RS = 159744
LDS_BYTES = 163840
SPIN_MAX = 100000

OPT = dict(a.split("=") for a in sys.argv[2:] if "=" in a)
STAMPS = "stamps" in sys.argv[2:]

def srd(a, d, base, nbytes, add=None):
    if add is None:
        a(f"s_mov_b32 s{d}, s{base}\ns_mov_b32 s{d+1}, s{base+1}")
    else:
        a(f"s_add_u32 s{d}, s{base}, {add}\ns_addc_u32 s{d+1}, s{base+1}, 0")
    a(f"s_mov_b32 s{d+2}, {nbytes}\ns_mov_b32 s{d+3}, 0x20000")

S_X, S_WA, S_WB, S_HF, S_SY, S_DB, S_W2 = 8, 12, 16, 20, 24, 28, 32
S_WAVE, S_LW, S_T0, S_T1 = 36, 37, 38, 39
S_XO, S_WO = 40, 48
S_ROW0, S_L2E, S_KK0 = 56, 57, 58
S_M3 = 59
S_RPA, S_RPB, S_CPO, S_CZ, S_ARR, S_SIG = 62, 63, 64, 65, 66, 67
S_MSK = 68
S_CNT2, S_IDX, S_LW2, S_KQ, S_RH, S_RB, S_CB, S_JINC = 74, 75, 76, 77, 78, 79, 80, 81
S_PX, S_PQ = 4, 6
S_PWO = 82
S_PG = 84
S_PWD = 88
S_PDB = 92
S_A, S_B, S_C, S_D = 96, 97, 98, 99
def stamp(a, i):
    if STAMPS:
        a(f"s_memrealtime s[100:101]\ns_waitcnt lgkmcnt(0)\nv_writelane_b32 v255, s100, {i}")
def stamp_write(a):
    if not STAMPS: return
    a("s_waitcnt lgkmcnt(0) vmcnt(0)")
    a(f"s_lshl_b32 s{S_A}, s2, 3\ns_add_u32 s{S_A}, s{S_A}, s{S_WAVE}\ns_lshl_b32 s{S_A}, s{S_A}, 6\ns_add_u32 s{S_A}, s{S_A}, {128<<20}")
    a(f"v_mbcnt_lo_u32_b32 v9, -1, 0\nv_mbcnt_hi_u32_b32 v9, -1, v9")
    a(f"v_lshl_add_u32 v8, v9, 2, s{S_A}")
    a(f"v_cmp_gt_u32 vcc, 16, v9")
    a("s_and_saveexec_b64 s[100:101], vcc")
    a(f"global_store_dword v8, v255, s[{S_PDB+2}:{S_PDB+3}]")
    a("s_mov_b64 exec, s[100:101]")

class VM:
    def __init__(self): self.tags = []
    def add(self, tag): self.tags.append(tag)
    def wait(self, tags):
        idx = [i for i, t in enumerate(self.tags) if t in tags]
        last = max(idx)
        n = len(self.tags) - 1 - last
        assert n <= 63
        return n
    def copy(self):
        v = VM(); v.tags = list(self.tags); return v

def mfma32(d, A, B, c=None):
    return f"v_mfma_f32_16x16x32_bf16 {vr(d,4)}, {vr(A,4)}, {vr(B,4)}, {vr(d,4) if c is None else c}"
def mfma16(d, A, B, c=None):
    return f"v_mfma_f32_16x16x16_bf16 {vr(d,4)}, {vr(A,2)}, {vr(B,2)}, {vr(d,4) if c is None else c}"

def emit_half(a, vm, main, early, spread, first=0):
    n = len(main)
    slots = [[] for _ in range(n)]
    for i, e in enumerate(early):
        slots[min(i, n - 1)].append((None, e))
    k = len(spread)
    for i, e in enumerate(spread):
        pos = first + (i * (n - first)) // k if k else 0
        slots[min(pos, n - 1)].append(e)
    for m, sl in zip(main, slots):
        a(m)
        for tag, text in sl:
            a(text)
            if tag: vm.add(tag)

V_LANE, V_L16 = 1, 3
V_XD = (4, 5, 6, 16); V_WD = 7; V_XR = (8, 9); V_XR2 = (18, 19)
V_WR = (10, 11, 12, 13)
V_TR, V_TC, V_TS = 14, 15, 17
V_SR = (20, 21); V_RPO, V_CPO, V_L0, V_ONE, V_PL, V_PA, V_TW, V_W2D = 22, 23, 24, 25, 26, 28, 29, 30
V_TCH = (31, 32); V_TD = (33, 34)
V_FREE = 36

def poll_a_check(a):
    lo = a.newlabel("PA_ok"); ls = a.newlabel("PA_spin")
    a(f"v_readlane_b32 s{S_A}, v{V_PL}, 0\nv_readlane_b32 s{S_B}, v{V_PL}, 1")
    a(f"s_add_u32 s{S_A}, s{S_A}, s{S_B}\ns_cmp_ge_u32 s{S_A}, 256\ns_cbranch_scc1 {lo}")
    a(f"s_mov_b32 s{S_C}, 0")
    a.label(ls)
    a(f"s_sleep 2\nbuffer_load_dword v{V_PL}, v{V_PL+1}, {sr(S_DB,4)}, 0 offen sc1\ns_waitcnt vmcnt(0)")
    a(f"v_readlane_b32 s{S_A}, v{V_PL}, 0\nv_readlane_b32 s{S_B}, v{V_PL}, 1")
    a(f"s_add_u32 s{S_C}, s{S_C}, 1\ns_cmp_ge_u32 s{S_C}, {SPIN_MAX}\ns_cbranch_scc1 {lo}")
    a(f"s_add_u32 s{S_A}, s{S_A}, s{S_B}\ns_cmp_lt_u32 s{S_A}, 256\ns_cbranch_scc1 {ls}")
    a.label(lo)

def bf16_round(v): return f"v_cvt_pk_bf16_f32 v{v}, v{v}, v{v}\nv_lshlrev_b32 v{v}, 16, v{v}"

def rows_loads(P):
    return [("part", f"buffer_load_dwordx2 {vr(P+2*s,2)}, v{V_PA}, {sr(S_SY,4)}, 0 offen offset:{128*s} sc1") for s in range(8)]
def rows_compute(P, with_rs):
    o = []
    for s in range(1, 8): o.append(f"v_add_f32 v{P}, v{P}, v{P+2*s}\nv_add_f32 v{P+1}, v{P+1}, v{P+2*s+1}")
    o.append(f"v_mul_f32 v{P}, 0xbb000000, v{P}\nv_mul_f32 v{P+1}, 0x3b000000, v{P+1}")
    o.append(f"v_fma_f32 v{P+1}, -v{P}, v{P}, v{P+1}\nv_max_f32 v{P+1}, 0, v{P+1}")
    o.append(bf16_round(P + 1))
    o.append(f"v_add_f32 v{P+1}, 0x3727c5ac, v{P+1}\nv_cvt_pk_bf16_f32 v{P}, v{P}, v{P}")
    o.append(bf16_round(P + 1))
    o.append(f"v_sqrt_f32 v{P+1}, v{P+1}")
    o.append(bf16_round(P + 1))
    o.append(f"v_rcp_f32 v{P+1}, v{P+1}")
    o.append(f"ds_write_b64 v{V_TW}, {vr(P,2)}")
    if with_rs:
        o.append(f"v_lshrrev_b32 v{P+2}, 1, v{V_TW}\nv_add_u32 v{P+2}, {LT_RS - LT_ROW//2}, v{P+2}\nds_write_b32 v{P+2}, v{P+1}")
    return o
def cols_loads(P, stride):
    return [("part", f"buffer_load_dword v{P+s}, v{V_PA}, {sr(S_SY,4)}, 0 offen offset:{stride*s} sc1") for s in range(8)]
def cols_compute(P):
    o = []
    o.append(f"v_add_f32 v{P}, v{P}, v{P+1}\nv_add_f32 v{P+2}, v{P+2}, v{P+3}")
    o.append(f"v_add_f32 v{P+4}, v{P+4}, v{P+5}\nv_add_f32 v{P+6}, v{P+6}, v{P+7}")
    o.append(f"v_add_f32 v{P}, v{P}, v{P+2}\nv_add_f32 v{P+4}, v{P+4}, v{P+6}")
    o.append(f"v_add_f32 v{P}, v{P}, v{P+4}\nv_cvt_pk_bf16_f32 v{P+2}, v{P}, v{P}")
    o.append(f"v_lshlrev_b32 v{P+1}, 16, v{P+2}\nv_sub_f32 v{P}, v{P}, v{P+1}")
    o.append(f"v_cvt_pk_bf16_f32 v{P+4}, v{P}, v{P}\nv_lshlrev_b32 v{P+1}, 16, v{P+4}")
    o.append(f"v_sub_f32 v{P}, v{P}, v{P+1}\nv_cvt_pk_bf16_f32 v{P+3}, v{P}, v{P}")
    o.append(f"v_and_b32 v{P+2}, 0xffff, v{P+2}\nv_or_b32 v{P+2}, v{P+2}, v{P+1}")
    o.append(f"v_and_b32 v{P+3}, 0xffff, v{P+3}\nds_write_b64 v{V_TW}, {vr(P+2,2)}")
    return o

def arrival():
    return [("arr", f"buffer_atomic_add v{V_ONE}, v{V_L0}, {sr(S_DB,4)}, s{S_ARR} offen sc1")]
def poll_a_load():
    return [("poll", f"buffer_load_dword v{V_PL}, v{V_PL+1}, {sr(S_DB,4)}, 0 offen sc1")]
def touches():
    return [("tch", f"global_load_dword v{V_TD[0]}, v{V_TCH[0]}, {sr(S_PWD,2)}"),
            ("tch", f"global_load_dword v{V_TD[1]}, v{V_TCH[1]}, {sr(S_PWO,2)}")]

NA = 9; NB = 10
def w2_dma(part, n):
    out = []
    for i in range(n):
        for j in range(2):
            pre = f"s_lshl_b32 s{S_T0}, s{S_IDX}, 15\n" if j == 0 else f"s_add_u32 s{S_T0}, s{S_T0}, s{S_JINC}\n"
            post = f"\ns_add_u32 s{S_IDX}, s{S_IDX}, 1\ns_cmp_eq_u32 s{S_IDX}, 19\ns_cselect_b32 s{S_IDX}, 0, s{S_IDX}" if j == 1 else ""
            out.append((f"w2{part}", f"s_add_u32 m0, s{S_LW2}, {i*4096 + j*1024}\n{pre}buffer_load_dwordx4 v{V_W2D}, {sr(S_W2,4)}, s{S_T0} offen lds{post}"))
    return out

def main_loop(a, vm, reads, mfmas, dma_first, dma_rest, need_tags, hooks):
    a(f"s_waitcnt vmcnt({vm.wait(need_tags(0))})\ns_barrier")
    stamp(a, 2)
    for r in reads(0, 0, 0) + hooks.get("pre", []): a(r)
    carry = []
    for s in range(8):
        h = hooks.get((s, 0), {})
        a("s_waitcnt lgkmcnt(0)")
        emit_half(a, vm, mfmas(0, s == 0) + h.get("mfma", []), reads(s, 1, 1) + h.get("early", []), carry + h.get("spread", []), first=h.get("first", 1))
        h = hooks.get((s, 1), {})
        need = (need_tags(s + 1) if s < 7 else ()) + tuple(hooks.get("need", {}).get(s, ()))
        if need: a(f"s_waitcnt vmcnt({vm.wait(need)}) lgkmcnt(0)")
        else: a("s_waitcnt lgkmcnt(0)")
        pb = hooks.get("pre_bar", {}).get(s)
        if pb: pb(a)
        a("s_barrier")
        rest = dma_rest(s)
        nb = (len(rest) + 1) // 2 - 1 if rest else 0
        nb = max(nb, 0)
        early = (reads(s + 1, 0, 0) if s < 7 else []) + h.get("early", [])
        emit_half(a, vm, h.get("mfma_pre", []) + mfmas(1, False) + h.get("mfma", []), early, dma_first(s) + h.get("spread", []) + rest[:nb], first=h.get("first", 0))
        carry = rest[nb:]
        if s == 3: stamp(a, 3)

def mean_frags(a, T, rt, NT):
    mf = [T(2, 2) for t in range(NT)]
    vM0, vM1 = T(), T()
    a(f"v_cmp_gt_u32 vcc, 16, v{V_LANE}")
    a(f"v_cndmask_b32 v{vM0}, 0, -1, vcc")
    a(f"v_lshrrev_b32 v{vM1}, 16, v{vM0}")
    a("s_waitcnt lgkmcnt(0)")
    for t in range(NT):
        a(f"v_and_b32 v{mf[t]}, v{rt[t]}, v{vM0}\nv_and_b32 v{mf[t]+1}, v{rt[t]}, v{vM1}")
    return mf

G_XP = 24576; G_WB0 = 3 * G_XP; G_WP = 16384
def glu_dma_x(s):
    return [(f"x{s}", f"s_add_u32 m0, s{S_LW}, {(s % 3) * G_XP + i * 8192}\nbuffer_load_dwordx4 v{V_XD[i]}, {sr(S_X,4)}, s{S_XO+s} offen lds") for i in range(3)]
def glu_dma_w(h):
    s = h >> 1; out = []
    for mat in range(2):
        out.append((f"h{h}", f"s_add_u32 m0, s{S_LW}, {G_WB0 + (h % 5) * G_WP + mat * 8192}\ns_add_u32 s{S_T0}, s{S_WO+s}, {(h & 1) * 32 * 3584}\nbuffer_load_dwordx4 v{V_WD}, {sr((S_WA, S_WB)[mat],4)}, s{S_T0} offen lds"))
    return out

def gen_glu(a, NT, vm):
    rh = 0 if NT == 6 else 1
    R = RegAlloc(V_FREE, 255)
    acc = [[R(4, 4) for ct in range(4)] for t in range(NT)]
    xf = [[R(4, 4) for t in range(NT)] for st in range(2)]
    wf = [[R(4, 4) for ct in range(4)] for st in range(2)]
    X0 = R(40, 4)
    ones = X0; stf = [X0 + 4, X0 + 8]; ssum = [X0 + 12, X0 + 16]; ssq = [X0 + 20, X0 + 24]; csa = [X0 + 28, X0 + 32]
    stf2 = [xf[1][0], xf[1][1]]
    rt = [X0 + 16 + 2 * t for t in range(NT)]; cs = [X0 + 28 + 2 * ct for ct in range(4)]
    P = X0
    def reads(s, half, st):
        h = 2 * s + half; slot = h % 5
        wr = []
        for ct in range(4):
            tt, mat = ct >> 1, ct & 1
            for e in range(2):
                off = slot * G_WP + mat * 8192 + e * 1024
                hi = off > 65535
                wr.append(f"ds_read_b64_tr_b16 {vr(wf[st][ct]+2*e,2)}, v{V_WR[2*hi+tt]} offset:{off - (65536 if hi else 0)}")
        xr = [f"ds_read_b128 {vr(xf[st][t],4)}, v{V_XR[half]} offset:{(s % 3) * G_XP + t * 2048}" for t in range(NT)]
        return wr[:2] + xr + wr[2:]
    def mfmas(st, first):
        return [mfma32(acc[t][ct], wf[st][ct], xf[st][t], "0" if first else None) for ct in range(4) for t in range(NT)]
    def dma_first(s): return glu_dma_w(2 * s + 5) if 2 * s + 5 < 16 else []
    def dma_rest(s):
        return (glu_dma_w(2 * s + 6) if 2 * s + 6 < 16 else []) + (glu_dma_x(s + 3) if s + 3 < 8 else [])
    def need(s): return (f"x{s}", f"h{2*s}", f"h{2*s+1}")
    hooks = {}
    hooks["pre"] = [f"ds_read_b128 {vr(stf[i],4)}, v{V_SR[0]} offset:{16384*i}" for i in range(2)] + [f"v_mov_b32 v{ones+j}, 0x3f803f80" for j in range(4)]
    myct = (0, 1) if rh == 0 else (2, 3)
    hooks[(0, 0)] = dict(mfma=[mfma32(ssum[i], ones, stf[i], "0") for i in range(2)] + [mfma32(ssq[i], stf[i], stf[i], "0") for i in range(2)]
                         + [mfma32(csa[i], wf[0][myct[i]], ones, "0") + ("\n" + "\n".join(f"ds_read_b128 {vr(stf[k],4)}, v{V_SR[1]} offset:{16384*k}" for k in range(2)) if i == 0 else "") for i in range(2)])
    pub = []
    for i in range(2):
        q = ssq[i]
        pub.append((None, f"v_cndmask_b32 v{q}, v{q}, v{q+1}, {sr(S_MSK,2)}\nv_cndmask_b32 v{q}, v{q}, v{q+2}, {sr(S_MSK+2,2)}"))
        pub.append(("pub", f"v_cndmask_b32 v{ssum[i]+1}, v{q}, v{q+3}, {sr(S_MSK+4,2)}\nbuffer_store_dwordx2 {vr(ssum[i],2)}, v{V_RPO}, {sr(S_SY,4)}, s{(S_RPA,S_RPB)[i]} offen sc1"))
    for i in range(2):
        pub.append(("pub", f"buffer_store_dwordx4 {vr(csa[i],4)}, v{V_CPO}, {sr(S_SY,4)}, s{S_CPO} offen offset:{64*i} sc1"))
    hooks[(0, 1)] = dict(mfma_pre=[mfma32(ssum[i], ones, stf[i]) for i in range(2)] + [mfma32(ssq[i], stf[i], stf[i]) for i in range(2)]
                         + [mfma32(csa[i], wf[1][myct[i]], ones) for i in range(2)], spread=pub, first=4)
    hooks["need"] = {1: ("pub",), 5: ("poll",), 6: ("part",)}
    hooks[(1, 1)] = dict(spread=arrival())
    hooks[(4, 1)] = dict(spread=poll_a_load())
    hooks["pre_bar"] = {5: poll_a_check}
    hooks[(5, 1)] = dict(spread=(rows_loads(P) if rh == 0 else cols_loads(P, 128)) + touches())
    hooks[(6, 1)] = dict(spread=[(None, x) for x in (rows_compute(P, False) if rh == 0 else cols_compute(P))], first=2)
    tabs = [f"ds_read_b64 {vr(rt[t],2)}, v{V_TR} offset:{t*128}" for t in range(NT)]
    tabs += [f"ds_read_b64 {vr(cs[ct],2)}, v{V_TC} offset:{ct*128}" for ct in range(4)]
    hooks[(7, 1)] = dict(early=tabs, spread=w2_dma("a", NA))
    main_loop(a, vm, reads, mfmas, dma_first, dma_rest, need, hooks)
    stamp(a, 4)
    T = RegAlloc(xf[0][0], limit=X0)
    mf = mean_frags(a, T, rt, NT)
    for t in range(NT):
        for ct in range(4):
            a(mfma16(acc[t][ct], cs[ct], mf[t]))
    for t in range(NT):
        a(f"v_mul_f32 v{rt[t]}, s{S_L2E}, v{rt[t]+1}")
    pk = [T(4, 4) for _ in range(2)]
    for t in range(NT):
        G = [acc[t][0] + j for j in range(4)] + [acc[t][2] + j for j in range(4)]
        U = [acc[t][1] + j for j in range(4)] + [acc[t][3] + j for j in range(4)]
        for g in G: a(f"v_mul_f32 v{g}, v{g}, v{rt[t]}")
        for g in G: a(f"v_exp_f32 v{g}, v{g}")
        for u in U: a(f"v_mul_f32 v{u}, v{u}, v{rt[t]+1}")
        for g in G: a(f"v_add_f32 v{g}, 1.0, v{g}")
        for g in G: a(f"v_rcp_f32 v{g}, v{g}")
        for g, u in zip(G, U): a(f"v_mul_f32 v{u}, v{u}, v{g}")
        p = pk[t & 1]
        for i in range(4): a(f"v_cvt_pk_bf16_f32 v{p+i}, v{U[2*i]}, v{U[2*i+1]}")
        a(f"s_add_u32 s{S_T0}, s{S_ROW0}, {t*72*1024}")
        a(f"buffer_store_dwordx4 {vr(p,4)}, v{V_L16}, {sr(S_HF,4)}, s{S_T0} offen sc1")
    stamp(a, 5)
    a("s_branch P2_start")
    return R.n

Q_XP = 26624; Q_WB0 = 3 * Q_XP; Q_WP = 24576; Q_SCR = Q_WB0 + 3 * Q_WP
def qkv_dma_x(s):
    out = [(f"x{s}", f"s_add_u32 m0, s{S_LW}, {(s % 3) * Q_XP + i * 8192}\nbuffer_load_dwordx4 v{V_XD[i]}, {sr(S_X,4)}, s{S_XO+s} offen lds") for i in range(3)]
    out.append((f"x{s}", f"s_mov_b32 m0, s{S_M3 + s % 3}\nbuffer_load_dwordx4 v{V_XD[3]}, {sr(S_X,4)}, s{S_XO+s} offen lds"))
    return out
def qkv_dma_w(s):
    return [(f"w{s}", f"s_add_u32 m0, s{S_LW}, {Q_WB0 + (s % 3) * Q_WP + mat * 8192}\ns_add_u32 s{S_T0}, s{S_WO+s}, {mat*1024}\nbuffer_load_dwordx4 v{V_WD}, {sr(S_WA,4)}, s{S_T0} offen lds") for mat in range(3)]

def gen_qkv(a, vm):
    R = RegAlloc(V_FREE, 255)
    NT = 7
    aq = [None] + [R(4, 4) for t in range(1, NT)]
    ak = [R(4, 4) for t in range(NT)]
    av = [R(4, 4) for t in range(NT)]
    xf = [[R(4, 4) for t in range(NT)] for st in range(2)]
    wf = [[R(4, 4) for m in range(3)] for st in range(2)]
    rs4 = [R(4, 4) for t in range(NT)]
    rt = [R(2, 2) for t in range(NT)]
    cs = [R(2, 2) for m in range(3)]
    ones0 = rs4[0]; csa = rs4[1:4]; P = rs4[0]
    def reads(s, half, st):
        wr = []
        for mat in range(3):
            for e in range(2):
                off = (s % 3) * Q_WP + mat * 8192 + half * 4096 + e * 512
                hi = (s % 3) == 2
                wr.append(f"ds_read_b64_tr_b16 {vr(wf[st][mat]+2*e,2)}, v{V_WR[hi]} offset:{off - (2*Q_WP if hi else 0)}")
        if s % 3 == 2:
            xr = [f"ds_read_b128 {vr(xf[st][t],4)}, v{V_XR2[half]} offset:{t * 2048}" for t in range(NT)]
        else:
            xr = [f"ds_read_b128 {vr(xf[st][t],4)}, v{V_XR[half]} offset:{(s % 3) * Q_XP + t * 2048}" for t in range(NT)]
        return wr[2:4] + xr + wr[:2] + wr[4:]
    def mfmas(st, first):
        c = "0" if first else None
        out = [mfma32(ak[t], wf[st][1], xf[st][t], c) for t in range(NT)]
        out += [mfma32(aq[t], wf[st][0], xf[st][t], c) for t in range(1, NT)]
        out += [mfma32(av[t], xf[st][t], wf[st][2], c) for t in range(NT)]
        return out
    def dma_first(s): return []
    def dma_rest(s): return qkv_dma_w(s + 3) + qkv_dma_x(s + 3) if s + 3 < 8 else []
    def need(s): return (f"x{s}", f"w{s}")
    hooks = {}
    hooks["pre"] = [f"v_mov_b32 v{ones0+j}, 0x3f803f80" for j in range(4)]
    hooks[(0, 0)] = dict(mfma=[mfma32(csa[m], wf[0][m], ones0, "0") for m in range(3)])
    pub = [("pub", f"buffer_store_dwordx4 {vr(csa[m],4)}, v{V_CPO}, {sr(S_SY,4)}, s{S_CPO} offen offset:{64*m} sc1") for m in range(3)]
    hooks[(0, 1)] = dict(mfma_pre=[mfma32(csa[m], wf[1][m], ones0) for m in range(3)], spread=pub, first=6)
    hooks["need"] = {1: ("pub",), 5: ("poll",), 6: ("part",)}
    hooks[(1, 1)] = dict(spread=arrival())
    hooks[(4, 1)] = dict(spread=poll_a_load())
    def branchy(rows, cols):
        l1 = a.newlabel("QB"); l2 = a.newlabel("QB")
        return rows, cols, l1, l2
    def pre5(a_):
        poll_a_check(a_)
        l1 = a_.newlabel("QB"); l2 = a_.newlabel("QB")
        a_(f"s_cmp_ge_u32 s{S_WAVE}, 4\ns_cbranch_scc1 {l1}")
        for t, x in rows_loads(P): a_(x)
        a_(f"s_branch {l2}")
        a_.label(l1)
        for t, x in cols_loads(P, 256): a_(x)
        a_.label(l2)
        for _ in range(8): vm.add("part")
    def pre6(a_):
        l1 = a_.newlabel("QB"); l2 = a_.newlabel("QB")
        a_(f"s_cmp_ge_u32 s{S_WAVE}, 4\ns_cbranch_scc1 {l1}")
        for x in rows_compute(P, True): a_(x)
        a_(f"s_branch {l2}")
        a_.label(l1)
        for x in cols_compute(P): a_(x)
        a_.label(l2)
    hooks["pre_bar"] = {5: pre5, 6: pre6}
    hooks[(5, 1)] = dict(spread=touches())
    tabs = []
    for t in range(NT):
        tabs.append(f"ds_read_b64 {vr(rt[t],2)}, v{V_TR} offset:{t*128}")
        tabs.append(f"ds_read_b128 {vr(rs4[t],4)}, v{V_TS} offset:{t*64}")
    tabs += [f"ds_read_b64 {vr(cs[m],2)}, v{V_TC} offset:{m*128}" for m in range(3)]
    hooks[(7, 1)] = dict(early=tabs, spread=w2_dma("a", NA))
    main_loop(a, vm, reads, mfmas, dma_first, dma_rest, need, hooks)
    stamp(a, 4)
    T = RegAlloc(xf[0][0], limit=rs4[0])
    mf = mean_frags(a, T, rt, NT)
    for t in range(NT):
        a(mfma16(ak[t], cs[1], mf[t]))
        if t: a(mfma16(aq[t], cs[0], mf[t]))
        a(mfma16(av[t], mf[t], cs[2]))
    Bc, Bp, Bf, ones = T(4, 4), T(4, 4), T(4, 4), T(4, 4)
    vm_, vk, vd, vbig = T(), T(), T(), T()
    a(f"v_and_b32 v{vm_}, 15, v{V_LANE}\nv_lshrrev_b32 v{vk}, 4, v{V_LANE}\nv_lshlrev_b32 v{vk}, 2, v{vk}")
    a(f"v_mov_b32 v{vbig}, 0x{NEG_BIG:x}")
    a(f"v_sub_u32 v{vd}, v{vm_}, v{vk}")
    for j in range(4):
        a(f"v_subrev_u32 v{Bc+j}, {j}, v{vd}")
        a(f"v_add_u32 v{Bp+j}, 1, v{Bc+j}")
        a(f"v_and_b32 v{Bc+j}, 0x80000001, v{Bc+j}")
        a(f"v_cmp_eq_u32 vcc, 0, v{Bc+j}")
        a(f"v_and_b32 v{Bp+j}, 0x80000001, v{Bp+j}")
        a(f"v_mov_b32 v{ones+j}, 0x3f803f80")
        a(f"v_cndmask_b32 v{Bc+j}, v{vbig}, 0, vcc")
        a(f"v_cmp_eq_u32 vcc, 0x80000001, v{Bp+j}")
        a(f"v_cndmask_b32 v{Bp+j}, v{vbig}, 0, vcc")
    a(f"s_cmp_lt_i32 s{S_ROW0}, 0\ns_cselect_b64 vcc, -1, 0")
    for j in range(4): a(f"v_cndmask_b32 v{Bf+j}, v{Bp+j}, v{vbig}, vcc")
    Kb = T(2 * NT, 2); Vb = T(2 * NT, 2); Qb = T(2 * NT, 2)
    for t in range(NT):
        for j in range(4): a(f"v_mul_f32 v{ak[t]+j}, v{ak[t]+j}, v{rt[t]+1}")
        for j in range(4): a(f"v_mul_f32 v{av[t]+j}, v{av[t]+j}, v{rs4[t]+j}")
        if t:
            a(f"v_mul_f32 v{rt[t]}, 0x3e800000, v{rt[t]+1}")
            for j in range(4): a(f"v_mul_f32 v{aq[t]+j}, v{aq[t]+j}, v{rt[t]}")
        for i in range(2):
            a(f"v_cvt_pk_bf16_f32 v{Kb+2*t+i}, v{ak[t]+2*i}, v{ak[t]+2*i+1}")
            a(f"v_cvt_pk_bf16_f32 v{Vb+2*t+i}, v{av[t]+2*i}, v{av[t]+2*i+1}")
            if t: a(f"v_cvt_pk_bf16_f32 v{Qb+2*t+i}, v{aq[t]+2*i}, v{aq[t]+2*i+1}")
    for t in range(1, NT):
        a(mfma16(ak[t], Kb + 2 * (t - 1), Qb + 2 * t, vr(Bf if t == 1 else Bp, 4)))
        a(mfma16(av[t], Kb + 2 * t, Qb + 2 * t, vr(Bc, 4)))
    for t in range(1, NT):
        m = rs4[t]
        a(f"v_max3_f32 v{m}, v{ak[t]}, v{ak[t]+1}, v{ak[t]+2}")
        a(f"v_max3_f32 v{m+1}, v{ak[t]+3}, v{av[t]}, v{av[t]+1}")
        a(f"v_max3_f32 v{m}, v{m}, v{av[t]+2}, v{av[t]+3}")
        a(f"v_max_f32 v{m}, v{m}, v{m+1}")
        a(f"v_mov_b32 v{m+1}, v{m}")
    for t in range(1, NT): a(f"v_permlane16_swap_b32 v{rs4[t]}, v{rs4[t]+1}")
    for t in range(1, NT): a(f"v_max_f32 v{rs4[t]}, v{rs4[t]}, v{rs4[t]+1}\nv_mov_b32 v{rs4[t]+1}, v{rs4[t]}")
    for t in range(1, NT): a(f"v_permlane32_swap_b32 v{rs4[t]}, v{rs4[t]+1}")
    for t in range(1, NT):
        a(f"v_max_f32 v{rs4[t]}, v{rs4[t]}, v{rs4[t]+1}")
        a(f"v_mul_f32 v{rs4[t]}, s{S_L2E}, v{rs4[t]}")
    for t in range(1, NT):
        S = [ak[t] + j for j in range(4)] + [av[t] + j for j in range(4)]
        for x in S: a(f"v_fma_f32 v{x}, -v{x}, s{S_L2E}, v{rs4[t]}")
        for x in S: a(f"v_exp_f32 v{x}, v{x}")
        for i in range(4): a(f"v_cvt_pk_bf16_f32 v{aq[t]+i}, v{S[2*i]}, v{S[2*i+1]}")
    for t in range(1, NT):
        a(mfma32(ak[t], Vb + 2 * (t - 1), aq[t], "0"))
        a(mfma32(av[t], ones, aq[t], "0"))
    for t in range(1, NT):
        a(f"v_rcp_f32 v{av[t]}, v{av[t]}")
    for t in range(1, NT, 2):
        o = aq[t]
        for u, tt in enumerate((t, t + 1)):
            for j in range(4): a(f"v_mul_f32 v{ak[tt]+j}, v{ak[tt]+j}, v{av[tt]}")
            a(f"v_cvt_pk_bf16_f32 v{o+2*u}, v{ak[tt]}, v{ak[tt]+1}\nv_cvt_pk_bf16_f32 v{o+2*u+1}, v{ak[tt]+2}, v{ak[tt]+3}")
    for t in range(1, NT, 2):
        o = aq[t]
        a(f"v_permlane16_swap_b32 v{o}, v{o+2}\nv_permlane16_swap_b32 v{o+1}, v{o+3}")
        a(f"s_add_u32 s{S_T0}, s{S_ROW0}, {t*72*1024}")
        a(f"buffer_store_dwordx4 {vr(o,4)}, v{V_L16}, {sr(S_HF,4)}, s{S_T0} offen sc1")
    stamp(a, 5)
    return R.n

def gen_p2(a):
    a.label("P2_start")
    R = RegAlloc(36, 255)
    acc = [[R(4, 4) for ct in range(4)] for tt in range(2)]
    wa = [[R(4, 4) for ct in range(4)] for i in range(NA)]
    NH = 5
    hf = [[R(4, 4) for tt in range(2)] for i in range(NH)]
    a(f"v_and_b32 v20, 15, v{V_LANE}\nv_lshrrev_b32 v21, 4, v{V_LANE}\nv_bfe_u32 v22, v{V_LANE}, 2, 2\nv_and_b32 v23, 3, v{V_LANE}")
    a("v_and_b32 v4, 1, v21\nv_lshlrev_b32 v4, 1, v4\nv_lshrrev_b32 v5, 1, v22\nv_or_b32 v4, v4, v5\nv_lshlrev_b32 v4, 5, v4\nv_lshl_add_u32 v4, v23, 3, v4")
    a(f"v_lshl_add_u32 v5, v21, 2, v22\nv_lshl_add_u32 v4, v5, 7, v4")
    a(f"s_mul_i32 s{S_A}, s{S_KQ}, {NA*4096}")
    a(f"v_add_u32 v8, s{S_A}, v4\nv_xor_b32 v9, 32, v8\nv_xor_b32 v10, 64, v8\nv_xor_b32 v11, 0x60, v8")
    a(f"s_mul_i32 s{S_C}, s{S_KQ}, 19\ns_sub_u32 s{S_C}, s{S_C}, 3\ns_max_i32 s{S_C}, s{S_C}, 0")
    a(f"s_lshl_b32 s{S_A}, s{S_RB}, 2\ns_lshl_b32 s{S_B}, s{S_RH}, 1\ns_add_u32 s{S_A}, s{S_A}, s{S_B}\ns_mul_i32 s{S_A}, s{S_A}, 72\ns_add_u32 s{S_A}, s{S_A}, s{S_C}\ns_lshl_b32 s{S_A}, s{S_A}, 10")
    a(f"v_lshl_add_u32 v6, v{V_LANE}, 4, s{S_A}\nv_add_u32 v7, {72*1024}, v6")
    a(f"s_mul_i32 s{S_A}, s{S_RB}, {4*5958}\ns_lshr_b32 s{S_A}, s{S_A}, 16")
    a(f"s_mul_i32 s{S_B}, s{S_RB}, {4*5958}\ns_add_u32 s{S_B}, s{S_B}, {3*5958}\ns_lshr_b32 s{S_B}, s{S_B}, 16")
    a(f"s_mul_i32 s{S_C}, s{S_RB}, 21846\ns_lshr_b32 s{S_C}, s{S_C}, 16\ns_add_u32 s{S_C}, s{S_C}, 12")
    a(f"s_cmp_eq_u32 s{S_KQ}, 0\ns_cselect_b32 s{S_A}, s{S_C}, s{S_A}\ns_cselect_b32 s{S_B}, s{S_C}, s{S_B}\ns_cselect_b32 s{S_D}, 8, 14")
    a(f"s_lshl_b32 s{S_A}, s{S_A}, 7\ns_lshl_b32 s{S_B}, s{S_B}, 7")
    a(f"v_mov_b32 v17, 0x80000000\nv_writelane_b32 v17, s{S_A}, 0\nv_writelane_b32 v17, s{S_B}, 1")
    a("s_waitcnt vmcnt(0)\ns_barrier")
    a(f"buffer_atomic_add v{V_ONE}, v{V_L0}, {sr(S_SY,4)}, s{S_SIG} offen sc1")
    stamp(a, 6)
    for i in range(NA):
        for ct in range(4):
            for e in range(2):
                a(f"ds_read_b64_tr_b16 {vr(wa[i][ct]+2*e,2)}, v{8+ct} offset:{i*4096+e*2048}")
    a(f"s_lshl_b32 s{S_A}, s{S_KQ}, 12")
    a(f"s_mul_i32 s{S_LW2}, s{S_KQ}, {NB*4096}\ns_lshl_b32 s{S_B}, s{S_RH}, 11\ns_add_u32 s{S_LW2}, s{S_LW2}, s{S_B}")
    a("s_waitcnt lgkmcnt(0)\ns_barrier")
    for i in range(4): a(f"v_add_u32 v{8+i}, s{S_A}, v{8+i}")
    vm = VM()
    for t, x in w2_dma("b", NB): a(x); vm.add(t)
    a("v_lshrrev_b32 v18, 3, v0\nv_and_b32 v19, 7, v0")
    a(f"s_lshl_b32 s{S_A}, s{S_RB}, 16\ns_lshl_b32 s{S_B}, s{S_CB}, 7\ns_add_u32 s{S_A}, s{S_A}, s{S_B}")
    a(f"v_lshlrev_b32 v5, 10, v18\nv_lshl_add_u32 v5, v19, 4, v5\nv_add_u32 v5, s{S_A}, v5")
    xr = 28
    a(f"buffer_load_dwordx4 {vr(xr,4)}, v5, {sr(S_X,4)}, 0 offen")
    stamp(a, 7)
    a(f"s_mov_b32 s{S_C}, 0")
    a.label("P2_poll")
    a(f"buffer_load_dword v16, v17, {sr(S_SY,4)}, 0 offen sc1\ns_waitcnt vmcnt(0)")
    a(f"v_readlane_b32 s{S_A}, v16, 0\nv_readlane_b32 s{S_B}, v16, 1")
    a(f"s_add_u32 s{S_C}, s{S_C}, 1\ns_cmp_ge_u32 s{S_C}, {SPIN_MAX}\ns_cbranch_scc1 P2_go")
    a(f"s_min_u32 s{S_A}, s{S_A}, s{S_B}\ns_cmp_lt_u32 s{S_A}, s{S_D}\ns_cbranch_scc1 P2_poll")
    a.label("P2_go")
    stamp(a, 8)
    vm = VM()
    hbuf = list(hf)
    def hload(i, buf):
        a(f"s_cmp_lt_u32 s{S_IDX}, s{S_CNT2}\ns_cselect_b32 s{S_T1}, s{S_IDX}, 0x100000\ns_lshl_b32 s{S_T1}, s{S_T1}, 10")
        for tt in range(2):
            a(f"buffer_load_dwordx4 {vr(buf[tt],4)}, v{6+tt}, {sr(S_HF,4)}, s{S_T1} offen sc1"); vm.add(f"h{i}")
        a(f"s_add_u32 s{S_IDX}, s{S_IDX}, 1\ns_cmp_eq_u32 s{S_IDX}, 19\ns_cselect_b32 s{S_IDX}, 0, s{S_IDX}")
    NS = NA + NB
    bufs = {}
    free = list(hf)
    nxt = 0
    while free and nxt < NS:
        bufs[nxt] = free.pop(0); hload(nxt, bufs[nxt]); nxt += 1
    wb = None
    for i in range(NS):
        if i == NA:
            a("s_barrier")
        if i >= NA - 1 and i + 1 < NS and i + 1 >= NA and i + 1 > NA:
            pass
        if i < NA:
            w = wa[i]
        else:
            j = i - NA
            w = wa[j & 1]
            if j == 0:
                for ct in range(4):
                    for e in range(2): a(f"ds_read_b64_tr_b16 {vr(w[ct]+2*e,2)}, v{8+ct} offset:{j*4096+e*2048}")
            if j + 1 < NB:
                w2 = wa[(j + 1) & 1]
                for ct in range(4):
                    for e in range(2): a(f"ds_read_b64_tr_b16 {vr(w2[ct]+2*e,2)}, v{8+ct} offset:{(j+1)*4096+e*2048}")
                a("s_waitcnt lgkmcnt(8)")
            else:
                a("s_waitcnt lgkmcnt(0)")
        a(f"s_waitcnt vmcnt({vm.wait((f'h{i}',))})")
        for ct in range(4):
            for tt in range(2):
                a(mfma32(acc[tt][ct], w[ct], bufs[i][tt], "0" if i == 0 else None))
        free.append(bufs[i])
        if 2 <= i < NA:
            free.append([wa[i][0], wa[i][1]]); free.append([wa[i][2], wa[i][3]])
        while free and nxt < NS:
            bufs[nxt] = free.pop(0); hload(nxt, bufs[nxt]); nxt += 1
    stamp(a, 9)
    a(f"s_mul_i32 s{S_A}, s{S_KQ}, 17408\ns_mul_i32 s{S_B}, s{S_RH}, {32*272}\ns_add_u32 s{S_A}, s{S_A}, s{S_B}")
    a(f"v_mul_u32_u24 v8, 272, v20\nv_lshl_add_u32 v8, v21, 4, v8\nv_add_u32 v8, s{S_A}, v8")
    a("v_mul_u32_u24 v9, 272, v18\nv_lshl_add_u32 v9, v19, 5, v9")
    a("s_barrier")
    for tt in range(2):
        for ct in range(4):
            a(f"ds_write_b128 v8, {vr(acc[tt][ct],4)} offset:{tt*16*272 + ct*64}")
    srd(a, S_WB, S_PWD + 2, 2048 * 1024)
    a("s_waitcnt lgkmcnt(0)\ns_barrier")
    P = wa[2][0]; E = wa[4][0]
    for q in (1, 2, 3, 0):
        for h in range(2):
            a(f"ds_read_b128 {vr(P+8*q+4*h,4)}, v9 offset:{q*17408 + h*16}")
    for i in range(4):
        a(f"v_lshlrev_b32 v{E+8+2*i}, 16, v{xr+i}\nv_and_b32 v{E+9+2*i}, 0xffff0000, v{xr+i}")
    a("s_waitcnt lgkmcnt(4)")
    for j in range(8): a(f"v_add_f32 v{P+8+j}, v{P+8+j}, v{P+16+j}")
    a("s_waitcnt lgkmcnt(2)")
    for j in range(8): a(f"v_add_f32 v{P+8+j}, v{P+8+j}, v{P+24+j}")
    for j in range(8): a(f"v_mul_f32 v{E+j}, s{S_L2E}, v{P+8+j}")
    for j in range(8): a(f"v_exp_f32 v{E+j}, v{E+j}")
    a("s_waitcnt lgkmcnt(0)")
    for j in range(8): a(f"v_mul_f32 v{P+j}, v{P+j}, v{P+8+j}")
    for j in range(8): a(f"v_add_f32 v{E+j}, 1.0, v{E+j}")
    for j in range(8): a(f"v_rcp_f32 v{E+j}, v{E+j}")
    for j in range(8): a(f"v_fmac_f32 v{E+8+j}, v{P+j}, v{E+j}")
    for i in range(4): a(f"v_cvt_pk_bf16_f32 v{xr+i}, v{E+8+2*i}, v{E+9+2*i}")
    a(f"buffer_store_dwordx4 {vr(xr,4)}, v5, {sr(S_WB,4)}, 0 offen")
    stamp(a, 10)
    if STAMPS:
        a("s_waitcnt vmcnt(0)"); stamp(a, 11)
    stamp_write(a)
    return R.n

def rot_offsets(a, lo, hi, pitch):
    for s in range(lo, hi):
        a(f"s_add_u32 s{S_T0}, s{S_KK0}, {s}\ns_and_b32 s{S_T0}, s{S_T0}, 7\ns_lshl_b32 s{S_XO+s}, s{S_T0}, 7\ns_mul_i32 s{S_WO+s}, s{S_T0}, {64*pitch}")

def common_late_setup(a):
    srd(a, S_HF, S_PDB + 2, HF_BYTES, add=WS_HF)
    srd(a, S_SY, S_PDB + 2, SYNC_BYTES)
    srd(a, S_DB, S_PDB, 256)
    a(f"s_mov_b32 s{S_L2E}, 0x{LOG2E | 0x80000000:x}")
    for j in range(3):
        pat = 0x11111111 << (j + 1)
        a(f"s_mov_b32 s{S_MSK+2*j}, 0x{pat:x}\ns_mov_b32 s{S_MSK+2*j+1}, 0x{pat:x}")
    a("v_mov_b32 v42, 0x80000000")
    a(f"v_lshrrev_b32 v43, 2, v36\nv_cmp_eq_u32 vcc, v43, v37\nv_lshlrev_b32 v43, 3, v36\nv_mov_b32 v{V_ONE}, 1")
    a(f"v_cndmask_b32 v{V_RPO}, v42, v43, vcc")
    a(f"v_cmp_eq_u32 vcc, 0, v36\nv_lshlrev_b32 v43, 4, v37\nv_lshlrev_b32 v44, 7, v{V_LANE}")
    a(f"v_cndmask_b32 v{V_CPO}, v42, v43, vcc")
    a(f"v_cmp_eq_u32 vcc, 0, v{V_LANE}\nv_mov_b32 v45, 0")
    a(f"v_cndmask_b32 v{V_L0}, v42, v45, vcc")
    a(f"v_cmp_gt_u32 vcc, 2, v{V_LANE}")
    a(f"v_cndmask_b32 v{V_PL+1}, v42, v44, vcc")
    a(f"buffer_store_dword v45, v{V_L0}, {sr(S_SY,4)}, s{S_CZ} offen sc1")
    a(f"s_bfe_u32 s{S_A}, s2, 0x10003\ns_lshl_b32 s{S_A}, s{S_A}, 7\ns_cmp_eq_u32 s{S_WAVE}, 0\ns_cselect_b32 s{S_ARR}, s{S_A}, {HUGE_S}\ns_cselect_b32 s{S_SIG}, s{S_SIG}, {HUGE_S}")
    a(f"s_and_b32 s{S_A}, s2, 7\ns_lshr_b32 s{S_B}, s2, 3\ns_and_b32 s{S_C}, s{S_B}, 3\ns_lshl_b32 s{S_RB}, s{S_A}, 2\ns_add_u32 s{S_RB}, s{S_RB}, s{S_C}\ns_lshr_b32 s{S_CB}, s{S_B}, 2")
    a(f"s_and_b32 s{S_KQ}, s{S_WAVE}, 3\ns_lshr_b32 s{S_RH}, s{S_WAVE}, 2")
    a(f"s_mul_i32 s{S_IDX}, s{S_CB}, 19\ns_lshr_b32 s{S_IDX}, s{S_IDX}, 3")
    a(f"s_mov_b32 s{S_CNT2}, 19\ns_cmp_eq_u32 s{S_KQ}, 3\ns_cselect_b32 s{S_CNT2}, 18, s{S_CNT2}\ns_cmp_eq_u32 s{S_KQ}, 0\ns_cselect_b32 s{S_CNT2}, 16, s{S_CNT2}")
    a(f"s_sub_u32 s{S_C}, s{S_KQ}, 1\ns_mul_i32 s{S_C}, s{S_C}, {19*32768}\ns_add_u32 s{S_C}, s{S_PWD}, s{S_C}\ns_addc_u32 s{S_D}, s{S_PWD+1}, 0")
    a(f"s_cmp_eq_u32 s{S_KQ}, 0\ns_cselect_b32 s{S_W2}, s{S_PWO}, s{S_C}\ns_cselect_b32 s{S_W2+1}, s{S_PWO+1}, s{S_D}\ns_lshl_b32 s{S_W2+2}, s{S_CNT2}, 15\ns_mov_b32 s{S_W2+3}, 0x20000")
    a(f"s_mul_i32 s{S_LW2}, s{S_KQ}, {NA*4096}\ns_lshl_b32 s{S_C}, s{S_RH}, 11\ns_add_u32 s{S_LW2}, s{S_LW2}, s{S_C}")
    a(f"v_lshrrev_b32 v43, 1, v39\nv_xor_b32 v43, v43, v37\nv_lshlrev_b32 v43, 5, v43\nv_and_b32 v44, 1, v{V_LANE}\nv_lshl_add_u32 v43, v44, 4, v43")
    a(f"v_and_b32 v44, 4, v38\nv_add_u32 v44, v44, v38")
    a(f"s_cmp_eq_u32 s{S_KQ}, 0\ns_cselect_b64 vcc, -1, 0\ns_cselect_b32 s{S_JINC}, 2, 1\ns_cselect_b32 s{S_D}, 12, 14\ns_lshl_b32 s{S_JINC}, s{S_JINC}, 13")
    a("v_cndmask_b32 v44, v38, v44, vcc\nv_lshl_add_u32 v43, v44, 10, v43")
    a(f"s_lshl_b32 s{S_C}, s{S_CB}, 7\ns_lshl_b32 s{S_D}, s{S_RH}, s{S_D}\ns_add_u32 s{S_C}, s{S_C}, s{S_D}\nv_add_u32 v{V_W2D}, s{S_C}, v43")
    a(f"s_lshl_b32 s{S_C}, s{S_B}, 3\ns_add_u32 s{S_C}, s{S_C}, s{S_WAVE}\ns_mul_i32 s{S_D}, s{S_C}, {56*128}\ns_lshl_b32 s{S_C}, s{S_C}, 11")
    a(f"v_min_u32 v43, 55, v{V_LANE}\nv_lshl_add_u32 v{V_TCH[0]}, v43, 7, s{S_D}\nv_lshl_add_u32 v{V_TCH[1]}, v36, 7, s{S_C}")

def gen(a):
    a.begin(KNAME)
    a(f"s_load_dwordx4 s[4:7], s[0:1], 0\ns_load_dwordx4 s[{S_PG}:{S_PG+3}], s[0:1], 32\ns_load_dwordx2 s[{S_PWO}:{S_PWO+1}], s[0:1], 16\ns_load_dwordx8 s[{S_PWD}:{S_PWD+7}], s[0:1], 48")
    a("s_cmp_ge_u32 s2, 256\ns_cbranch_scc1 K_exit")
    if STAMPS: a("v_mov_b32 v255, 0")
    a(f"v_and_b32 v{V_LANE}, 63, v0\nv_lshrrev_b32 v2, 6, v0")
    a(f"v_readfirstlane_b32 s{S_WAVE}, v2")
    a(f"s_and_b32 s{S_A}, s2, 7\ns_lshr_b32 s{S_B}, s2, 3")
    a(f"v_and_b32 v36, 15, v1\nv_lshrrev_b32 v37, 4, v1\nv_lshrrev_b32 v38, 3, v1\nv_and_b32 v39, 7, v1")
    a(f"s_lshl_b32 s{S_LW}, s{S_WAVE}, 10")
    a(f"s_and_b32 s{S_C}, s{S_WAVE}, 1\ns_lshl_b32 s{S_C}, s{S_C}, 2")
    a(f"v_or_b32 v42, s{S_C}, v37\nv_xor_b32 v42, v42, v39\nv_lshlrev_b32 v42, 4, v42")
    a("v_lshl_add_u32 v43, v2, 3, v38\nv_lshl_add_u32 v42, v43, 10, v42")
    a("v_mov_b32 v46, 0x80000000")
    a(f"s_cmp_lt_u32 s{S_B}, 11\ns_cbranch_scc1 K_qkv")
    a(f"s_mul_i32 s{S_A}, s{S_A}, 21\ns_add_u32 s{S_A}, s{S_A}, s{S_B}\ns_sub_u32 s{S_A}, s{S_A}, 11")
    a(f"s_mul_i32 s{S_C}, s{S_A}, 43691\ns_lshr_b32 s{S_C}, s{S_C}, 19")
    a(f"s_mul_i32 s{S_D}, s{S_C}, 12\ns_sub_u32 s{S_D}, s{S_A}, s{S_D}")
    a(f"s_add_u32 s{S_KK0}, s{S_C}, s{S_D}\ns_and_b32 s{S_KK0}, s{S_KK0}, 7")
    rot_offsets(a, 0, 1, 3584)
    a(f"s_mul_i32 s{S_A}, s{S_D}, {176*1024}")
    a(f"v_add_u32 v4, s{S_A}, v42\nv_add_u32 v5, 0x10000, v4\nv_add_u32 v6, 0x20000, v4")
    a(f"s_cmp_ge_u32 s{S_WAVE}, 6\ns_cselect_b64 vcc, -1, 0")
    a("v_cndmask_b32 v6, v6, v46, vcc")
    a(f"s_bfe_u32 s{S_A}, s{S_WAVE}, 0x10001\ns_lshl_b32 s{S_A}, s{S_A}, 2")
    a(f"v_or_b32 v44, s{S_A}, v37\nv_lshrrev_b32 v45, 1, v36\nv_xor_b32 v44, v44, v45\nv_lshlrev_b32 v44, 5, v44")
    a("v_and_b32 v45, 1, v1\nv_lshl_add_u32 v44, v45, 4, v44")
    a("v_lshl_add_u32 v45, v2, 2, v37\nv_mul_u32_u24 v45, 3584, v45\nv_add_u32 v44, v44, v45")
    a(f"s_lshl_b32 s{S_A}, s{S_C}, 8\nv_add_u32 v{V_WD}, s{S_A}, v44")
    a("s_waitcnt lgkmcnt(0)")
    stamp(a, 0)
    srd(a, S_X, S_PX, 2048 * 1024)
    srd(a, S_WA, S_PG, 512 * 3584)
    srd(a, S_WB, S_PG + 2, 512 * 3584)
    vmg = VM()
    for t, x in glu_dma_x(0) + glu_dma_w(0) + glu_dma_w(1): a(x); vmg.add(t)
    rot_offsets(a, 1, 8, 3584)
    a("s_barrier")
    for t, x in glu_dma_x(1) + glu_dma_w(2) + glu_dma_w(3): a(x); vmg.add(t)
    a("v_bfe_u32 v40, v1, 2, 2\nv_and_b32 v41, 3, v1")
    a("v_lshrrev_b32 v43, 1, v36\nv_xor_b32 v43, v43, v37\nv_lshlrev_b32 v43, 4, v43\nv_lshl_add_u32 v43, v36, 7, v43")
    a(f"s_lshr_b32 s{S_A}, s{S_WAVE}, 2\ns_mul_i32 s{S_B}, s{S_A}, {6*2048}")
    a(f"v_add_u32 v8, s{S_B}, v43\nv_xor_b32 v9, 64, v8")
    a(f"v_lshl_add_u32 v{V_SR[0]}, v2, 11, v43\nv_xor_b32 v{V_SR[1]}, 64, v{V_SR[0]}")
    a(f"v_lshlrev_b32 v{V_L16}, 4, v1")
    a(f"s_and_b32 s{S_T1}, s{S_WAVE}, 3\ns_lshl_b32 s{S_B}, s{S_T1}, 1")
    a(f"v_and_b32 v44, 1, v37\nv_lshl_or_b32 v44, v44, 2, v40\nv_xor_b32 v44, s{S_B}, v44\nv_lshlrev_b32 v44, 5, v44")
    a("v_lshl_add_u32 v44, v41, 3, v44\nv_lshl_add_u32 v45, v37, 3, v40\nv_lshl_add_u32 v44, v45, 8, v44")
    a(f"v_add_u32 v10, {G_WB0}, v44\nv_xor_b32 v11, 32, v10\nv_add_u32 v12, 0x10000, v10\nv_add_u32 v13, 0x10000, v11")
    a(f"s_mul_i32 s{S_B}, s{S_A}, 768\ns_add_u32 s{S_B}, s{S_B}, {LT_ROW}\nv_lshl_add_u32 v{V_TR}, v36, 3, s{S_B}")
    a(f"s_lshl_b32 s{S_B}, s{S_T1}, 9\ns_add_u32 s{S_B}, s{S_B}, {LT_CS}\nv_lshl_add_u32 v{V_TC}, v36, 3, s{S_B}")
    a(f"v_lshlrev_b32 v{V_TW}, 3, v0\nv_add_u32 v{V_TW}, {LT_ROW}, v{V_TW}")
    a(f"s_mul_i32 s{S_B}, s{S_D}, 11\ns_lshl_b32 s{S_T0}, s{S_T1}, 2\ns_add_u32 s{S_T0}, s{S_T0}, s{S_B}\ns_lshl_b32 s{S_T0}, s{S_T0}, 10\ns_add_u32 s{S_T0}, s{S_T0}, {WS_RP}")
    a(f"v_lshlrev_b32 v44, 10, v37\nv_lshl_add_u32 v44, v36, 3, v44\nv_add_u32 v44, s{S_T0}, v44")
    a(f"s_lshl_b32 s{S_ROW0}, s{S_C}, 2\ns_add_u32 s{S_ROW0}, s{S_ROW0}, s{S_T1}")
    a(f"s_lshl_b32 s{S_T0}, s{S_ROW0}, 11\ns_add_u32 s{S_T0}, s{S_T0}, {WS_CPG}")
    a(f"v_lshrrev_b32 v45, 5, v1\nv_lshlrev_b32 v45, 10, v45\nv_and_b32 v47, 31, v1\nv_lshl_add_u32 v45, v47, 2, v45\nv_add_u32 v45, s{S_T0}, v45")
    a(f"s_cmp_ge_u32 s{S_WAVE}, 4\ns_cselect_b64 vcc, -1, 0")
    a(f"v_cndmask_b32 v{V_PA}, v44, v45, vcc")
    a(f"s_lshl_b32 s{S_CPO}, s{S_A}, 10\ns_add_u32 s{S_CPO}, s{S_CPO}, s{S_T0}\ns_add_u32 s{S_CPO}, s{S_CPO}, s{S_XO}\ns_cmp_lt_u32 s{S_D}, 8\ns_cselect_b32 s{S_CPO}, s{S_CPO}, {HUGE_S}")
    a(f"s_add_u32 s{S_RPA}, s{S_B}, s{S_WAVE}\ns_lshl_b32 s{S_RPA}, s{S_RPA}, 10\ns_add_u32 s{S_RPA}, s{S_RPA}, s{S_XO}\ns_add_u32 s{S_RPA}, s{S_RPA}, {WS_RP}")
    a(f"s_cmp_lt_u32 s{S_C}, 8\ns_cselect_b32 s{S_RPA}, s{S_RPA}, {HUGE_S}\ns_add_u32 s{S_RPB}, s{S_RPA}, 8192\ns_cmp_lt_u32 s{S_WAVE}, 3\ns_cselect_b32 s{S_RPB}, s{S_RPB}, {HUGE_S}")
    a(f"s_lshl_b32 s{S_SIG}, s{S_D}, 7\ns_or_b32 s{S_T0}, s{S_C}, s{S_WAVE}\ns_cmp_eq_u32 s{S_T0}, 0\ns_cselect_b32 s{S_CZ}, s{S_SIG}, {HUGE_S}")
    a(f"s_mul_i32 s{S_A}, s{S_A}, 6\ns_add_u32 s{S_A}, s{S_A}, s{S_B}\ns_mul_i32 s{S_A}, s{S_A}, 72\ns_add_u32 s{S_ROW0}, s{S_ROW0}, s{S_A}\ns_add_u32 s{S_ROW0}, s{S_ROW0}, 16\ns_lshl_b32 s{S_ROW0}, s{S_ROW0}, 10")
    common_late_setup(a); vmg.add("pub")
    for t, x in glu_dma_x(2) + glu_dma_w(4): a(x); vmg.add(t)
    stamp(a, 1)
    a(f"s_cmp_ge_u32 s{S_WAVE}, 4\ns_cbranch_scc1 K_glu5\ns_branch K_glu6")
    a.label("K_qkv")
    a(f"s_mov_b32 s{S_C}, s{S_A}\ns_mov_b32 s{S_D}, s{S_B}")
    a(f"s_add_u32 s{S_KK0}, s{S_C}, s{S_D}\ns_and_b32 s{S_KK0}, s{S_KK0}, 7")
    rot_offsets(a, 0, 1, 3072)
    a(f"s_mul_i32 s{S_A}, s{S_D}, {192*1024}\ns_sub_u32 s{S_A}, s{S_A}, 16384")
    a(f"v_add_u32 v4, s{S_A}, v42\nv_add_u32 v5, 0x10000, v4\nv_add_u32 v6, 0x20000, v4\nv_add_u32 v16, 0x30000, v4")
    a(f"s_cmp_ge_u32 s{S_WAVE}, 2\ns_cselect_b64 vcc, -1, 0")
    a("v_cndmask_b32 v16, v16, v46, vcc")
    for i in range(3):
        a(f"s_add_u32 s{S_T0}, s{S_LW}, {i*Q_XP + 3*8192}\ns_cmp_lt_u32 s{S_WAVE}, 2\ns_cselect_b32 s{S_M3+i}, s{S_T0}, {Q_SCR}")
    a(f"s_and_b32 s{S_A}, s{S_WAVE}, 1\ns_lshl_b32 s{S_A}, s{S_A}, 1")
    a(f"v_and_b32 v44, 1, v37\nv_or_b32 v44, s{S_A}, v44\nv_lshrrev_b32 v45, 1, v39\nv_xor_b32 v44, v44, v45\nv_lshlrev_b32 v44, 5, v44")
    a("v_and_b32 v45, 1, v1\nv_lshl_add_u32 v44, v45, 4, v44")
    a("v_mul_u32_u24 v45, 3072, v43\nv_add_u32 v44, v44, v45")
    a(f"s_lshl_b32 s{S_A}, s{S_C}, 7\nv_add_u32 v{V_WD}, s{S_A}, v44")
    a("s_waitcnt lgkmcnt(0)")
    stamp(a, 0)
    srd(a, S_X, S_PX, 2048 * 1024)
    srd(a, S_WA, S_PQ, 512 * 3072)
    vmq = VM()
    for t, x in qkv_dma_x(0) + qkv_dma_w(0): a(x); vmq.add(t)
    rot_offsets(a, 1, 8, 3072)
    a("s_barrier")
    for t, x in qkv_dma_x(1) + qkv_dma_w(1): a(x); vmq.add(t)
    a("v_bfe_u32 v40, v1, 2, 2\nv_and_b32 v41, 3, v1")
    a("v_lshrrev_b32 v43, 1, v36\nv_xor_b32 v43, v43, v37\nv_lshlrev_b32 v43, 4, v43\nv_lshl_add_u32 v43, v36, 7, v43")
    a(f"s_lshr_b32 s{S_A}, s{S_WAVE}, 2\ns_mul_i32 s{S_B}, s{S_A}, {6*2048}")
    a(f"v_add_u32 v8, s{S_B}, v43\nv_xor_b32 v9, 64, v8\nv_add_u32 v18, {2*Q_XP}, v8\nv_add_u32 v19, {2*Q_XP}, v9")
    a(f"s_and_b32 s{S_T1}, s{S_WAVE}, 3")
    a(f"v_and_b32 v44, 1, v37\nv_lshlrev_b32 v44, 1, v44\nv_lshrrev_b32 v45, 1, v40\nv_or_b32 v44, v44, v45\nv_xor_b32 v44, s{S_T1}, v44\nv_lshlrev_b32 v44, 5, v44")
    a("v_lshl_add_u32 v44, v41, 3, v44\nv_lshl_add_u32 v45, v37, 3, v40\nv_lshl_add_u32 v44, v45, 7, v44")
    a(f"v_add_u32 v10, {Q_WB0}, v44\nv_add_u32 v11, {2*Q_WP}, v10")
    a(f"s_mul_i32 s{S_B}, s{S_A}, 768\ns_add_u32 s{S_B}, s{S_B}, {LT_ROW}\nv_lshl_add_u32 v{V_TR}, v36, 3, s{S_B}")
    a(f"s_mul_i32 s{S_B}, s{S_A}, 384\ns_add_u32 s{S_B}, s{S_B}, {LT_RS}\nv_lshl_add_u32 v{V_TS}, v37, 4, s{S_B}")
    a(f"s_lshl_b32 s{S_B}, s{S_T1}, 9\ns_add_u32 s{S_B}, s{S_B}, {LT_CS}\nv_lshl_add_u32 v{V_TC}, v36, 3, s{S_B}")
    a(f"v_lshlrev_b32 v{V_TW}, 3, v0\nv_add_u32 v{V_TW}, {LT_ROW}, v{V_TW}")
    a(f"s_mul_i32 s{S_B}, s{S_D}, 12\ns_sub_u32 s{S_B}, s{S_B}, 1\ns_lshl_b32 s{S_T0}, s{S_T1}, 2\ns_add_u32 s{S_T0}, s{S_T0}, s{S_B}")
    a(f"v_add_u32 v47, s{S_T0}, v37\nv_lshlrev_b32 v44, 10, v47\nv_lshl_add_u32 v44, v36, 3, v44\nv_add_u32 v44, {WS_RP}, v44")
    a("v_cmp_gt_u32 vcc, 132, v47")
    a(f"s_lshl_b32 s{S_ROW0}, s{S_C}, 2\ns_add_u32 s{S_ROW0}, s{S_ROW0}, s{S_T1}")
    a("v_cndmask_b32 v44, v46, v44, vcc")
    a(f"s_lshl_b32 s{S_T0}, s{S_ROW0}, 11\ns_add_u32 s{S_T0}, s{S_T0}, {WS_CPQ}")
    a(f"v_min_u32 v45, 47, v1\nv_lshl_add_u32 v45, v45, 2, s{S_T0}")
    a(f"s_cmp_ge_u32 s{S_WAVE}, 4\ns_cselect_b64 vcc, -1, 0")
    a(f"v_cndmask_b32 v{V_PA}, v44, v45, vcc")
    a(f"s_lshl_b32 s{S_CPO}, s{S_XO}, 1\ns_add_u32 s{S_CPO}, s{S_CPO}, s{S_T0}\ns_cmp_lt_u32 s{S_D}, 8\ns_cselect_b32 s{S_CPO}, s{S_CPO}, {HUGE_S}\ns_cmp_lt_u32 s{S_WAVE}, 4\ns_cselect_b32 s{S_CPO}, s{S_CPO}, {HUGE_S}")
    a(f"s_add_u32 s{S_SIG}, s{S_D}, 12\ns_lshl_b32 s{S_SIG}, s{S_SIG}, 7\ns_or_b32 s{S_T0}, s{S_C}, s{S_WAVE}\ns_cmp_eq_u32 s{S_T0}, 0\ns_cselect_b32 s{S_CZ}, s{S_SIG}, {HUGE_S}")
    a(f"s_and_b32 s{S_T0}, s{S_ROW0}, 1\ns_lshl_b32 s{S_T0}, s{S_T0}, 9")
    a(f"v_and_b32 v44, 1, v37\nv_mul_u32_u24 v44, {72*1024}, v44\nv_lshrrev_b32 v45, 1, v37\nv_lshl_add_u32 v44, v45, 8, v44\nv_lshl_add_u32 v44, v36, 4, v44\nv_add_u32 v{V_L16}, s{S_T0}, v44")
    a(f"s_mul_i32 s{S_A}, s{S_A}, 6\ns_add_u32 s{S_A}, s{S_A}, s{S_B}\ns_mul_i32 s{S_A}, s{S_A}, 72\ns_lshr_b32 s{S_ROW0}, s{S_ROW0}, 1\ns_add_u32 s{S_ROW0}, s{S_ROW0}, s{S_A}\ns_lshl_b32 s{S_ROW0}, s{S_ROW0}, 10")
    common_late_setup(a); vmq.add("pub")
    for t, x in qkv_dma_x(2) + qkv_dma_w(2): a(x); vmq.add(t)
    stamp(a, 1)
    a("s_branch K_qkvm")
    a.label("K_glu6")
    n1 = gen_glu(a, 6, vmg.copy())
    a.label("K_glu5")
    n2 = gen_glu(a, 5, vmg.copy())
    a.label("K_qkvm")
    n3 = gen_qkv(a, vmq)
    n4 = gen_p2(a)
    a.label("K_exit")
    a("s_endpgm")
    a.kernel(KNAME, (256, 1, 1), (512, 1, 1), LDS_BYTES, 256)
    print("vgprs", n1, n2, n3, n4, file=sys.stderr)

if __name__ == "__main__":
    a = Asm()
    hdr = open("recurrent_scan__sliding_local_dilated__glu_gated_glu__prompt.s.ref").read().split("\n")
    a.header = [l for l in hdr if l.startswith(";") and "@launch" not in l and "Override" not in l and "grid=ceil" not in l]
    gen(a)
    txt = a.text().replace(f"; @launch kernel={KNAME} grid", "; @launch grid")
    open(sys.argv[1], "w").write(txt)
    print("auto nops", a.n_auto_nops, file=sys.stderr)
```
